```python
import torch

def _softmax(x, axis=-1):
    return torch.softmax(x, dim=axis)
def _gelu(x):
    return torch.nn.functional.gelu(x, approximate="tanh")
def _silu(x):
    return torch.nn.functional.silu(x)
def _sigmoid(x):
    return torch.sigmoid(x)
def _layernorm(x, axis=-1, eps=1e-5):
    m = x.mean(dim=axis, keepdim=True)
    v = x.var(dim=axis, keepdim=True, unbiased=False)
    return (x - m) / torch.sqrt(v + eps)
def _scatter_add(tgt, idx, src, axis=0):
    return tgt.clone().index_add_(axis, idx, src)
def _segment_sum(src, seg, n):
    out = torch.zeros((n,) + src.shape[1:], dtype=src.dtype)
    return out.index_add_(0, seg, src)
def _pad(x, pw):
    flat = tuple(v for pair in reversed(pw) for v in pair)
    return torch.nn.functional.pad(x, flat)

kernel_name = 'recurrent_scan__mha_block_cached__mixer_s_mlp__prompt'

def setup_inputs():

    _w = (lambda a: (lambda t: t.to(torch.bfloat16) if t.is_floating_point() else t)(torch.as_tensor(a)))
    def _A_setup():
        B, Sq, D = 1, 2048, 512
        H, Sk, Dh = 32, 2048, 128
        return {
            "x": _w((lambda *s: torch.randn(*s, dtype=torch.bfloat16) * 0.05)(B, Sq, D)),
            "k_cache": _w((lambda *s: torch.randn(*s, dtype=torch.bfloat16) * 0.8)(B, H, Sk, Dh)),
            "v_cache": _w((lambda *s: torch.randn(*s, dtype=torch.bfloat16) * 0.8)(B, H, Sk, Dh)),
            "wq": _w((lambda *s: torch.randn(*s, dtype=torch.bfloat16) * 0.8)(D, H * Dh) * (D ** -0.5)),
            "wo": _w((lambda *s: torch.randn(*s, dtype=torch.bfloat16) * 0.8)(H * Dh, D) * ((H * Dh) ** -0.5)),
        }
    _A_in = _A_setup()

    def _B_setup():
        B, S, D, F = 1, 2048, 512, 1792
        return {
            "x":  _w((lambda *s: torch.randn(*s, dtype=torch.bfloat16) * 0.05)(B, S, D)),
            "w1": _w((lambda *s: torch.randn(*s, dtype=torch.bfloat16) * 3.2)(D, D) * (D ** -0.5)),
            "w2": _w((lambda *s: torch.randn(*s, dtype=torch.bfloat16) * 3.2)(D, D) * (D ** -0.5)),
            "w3": _w((lambda *s: torch.randn(*s, dtype=torch.bfloat16) * 3.2)(D, F) * (D ** -0.5)),
            "w4": _w((lambda *s: torch.randn(*s, dtype=torch.bfloat16) * 3.2)(F, D) * (F ** -0.5)),
        }
    _B_in = _B_setup()

    return {
        "A_x": _A_in["x"],
        "A_k_cache": _A_in["k_cache"],
        "A_v_cache": _A_in["v_cache"],
        "A_wq": _A_in["wq"],
        "A_wo": _A_in["wo"],
        "B_x": _B_in["x"],
        "B_w1": _B_in["w1"],
        "B_w2": _B_in["w2"],
        "B_w3": _B_in["w3"],
        "B_w4": _B_in["w4"],
    }

def reference(A_x, A_k_cache, A_v_cache, A_wq, A_wo, B_x, B_w1, B_w2, B_w3, B_w4):
    def _A_ref(x, k_cache, v_cache, wq, wo):
        B, Sq, D = x.shape
        H, Dh = 32, 128
        q = (lambda x, *d: x.permute(*d))((x @ wq).reshape(B, Sq, H, Dh), 0, 2, 1, 3)
        scores = torch.einsum("bhqd,bhkd->bhqk", q, k_cache) * (Dh ** -0.5)
        p = _softmax(scores, axis=-1)
        o = torch.einsum("bhqk,bhkd->bhqd", p, v_cache)
        return (lambda x, *d: x.permute(*d))(o, 0, 2, 1, 3).reshape(B, Sq, H * Dh) @ wo

    def _B_ref(x, w1, w2, w3, w4):
        B, S, D = x.shape
        h = _gelu(_layernorm(x, axis=-1) @ w1)
        c = D // 4
        g0 = _pad(h[:, :, 0*c:1*c], ((0, 0), (1, 0), (0, 0)))[:, :S, :]
        g1 = _pad(h[:, :, 1*c:2*c], ((0, 0), (0, 1), (0, 0)))[:, 1:, :]
        g2 = _pad(h[:, :, 2*c:3*c], ((0, 0), (2, 0), (0, 0)))[:, :S, :]
        g3 = _pad(h[:, :, 3*c:   ], ((0, 0), (0, 2), (0, 0)))[:, 2:, :]
        hs = torch.concatenate([g0, g1, g2, g3], axis=-1) @ w2
        x1 = x + hs
        h2 = _gelu(_layernorm(x1, axis=-1) @ w3) @ w4
        return x1 + h2

    x = A_x
    xn = _layernorm(x, axis=-1)
    s = _A_ref(xn, A_k_cache, A_v_cache, A_wq, A_wo)
    g = _silu(_B_ref(xn, B_w1, B_w2, B_w3, B_w4))
    return x + s * g
```

```python
def v(i, n=1):
    return f"v{i}" if n == 1 else f"v[{i}:{i+n-1}]"
def a(i, n=1):
    return f"a{i}" if n == 1 else f"a[{i}:{i+n-1}]"
def s(i, n=1):
    return f"s{i}" if n == 1 else f"s[{i}:{i+n-1}]"

class Asm:
    def __init__(self):
        self.lines = []
        self.uid = 0
    def e(self, line):
        self.lines.append("    " + line)
    def c(self, line):
        self.lines.append("    ; " + line)
    def label(self, name):
        self.lines.append(name + ":")
    def raw(self, text):
        self.lines.append(text)
    def newlabel(self, base="L"):
        self.uid += 1
        return f"{base}_{self.uid}"
    def text(self):
        return "\n".join(self.lines) + "\n"

def kernel_begin(A, name):
    A.raw(".text")
    A.raw(f".globl {name}")
    A.raw(".p2align 8")
    A.raw(f".type {name},@function")
    A.label(name)

def kernel_desc(A, name, vgpr=512, sgpr=102, accum=256):
    A.raw('.section .rodata,"a"')
    A.raw(".p2align 6")
    A.raw(f".amdhsa_kernel {name}")
    A.raw(f"  .amdhsa_next_free_vgpr {vgpr}")
    A.raw(f"  .amdhsa_next_free_sgpr {sgpr}")
    A.raw(f"  .amdhsa_accum_offset {accum}")
    A.raw("  .amdhsa_group_segment_fixed_size 0")
    A.raw("  .amdhsa_kernarg_size 104")
    A.raw("  .amdhsa_user_sgpr_count 2")
    A.raw("  .amdhsa_user_sgpr_kernarg_segment_ptr 1")
    A.raw("  .amdhsa_system_sgpr_workgroup_id_x 1")
    A.raw("  .amdhsa_float_denorm_mode_32 3")
    A.raw(".end_amdhsa_kernel")
```

```python
import re
REG = re.compile(r'^(-|abs\()?([vas])(\d+)\)?$')
RNG = re.compile(r'^(-|abs\()?([vas])\[(\d+):(\d+)\]\)?$')
def regs(tok):
    tok = tok.strip()
    m = REG.match(tok)
    if m: return [(m.group(2), int(m.group(3)))]
    m = RNG.match(tok)
    if m: return [(m.group(2), i) for i in range(int(m.group(3)), int(m.group(4)) + 1)]
    if tok == 'vcc': return [('s', 'vcc')]
    if tok == 'exec': return [('s', 'exec')]
    if tok == 'm0': return [('s', 'm0')]
    return []
TRANS = ('v_exp_f32', 'v_log_f32', 'v_rcp_f32', 'v_rsq_f32', 'v_sqrt_f32', 'v_sin_f32', 'v_cos_f32')
class I:
    pass
def parse(line):
    t = line.split(';')[0].strip()
    if not t or t.endswith(':') or t.startswith('.'): return None
    parts = t.split(None, 1)
    mn = parts[0]
    rest = parts[1] if len(parts) > 1 else ''
    mods = rest
    ops = [o.strip() for o in rest.split(',')] if rest else []
    if ops:
        last = ops[-1].split()
        ops[-1] = last[0] if last else ''
    ins = I(); ins.mn = mn; ins.line = line; ins.ops = ops; ins.mods = mods
    ins.w = []; ins.r = []; ins.kind = 'other'; ins.srcc = []; ins.srcab = []; ins.data = []
    ins.dpp = ('row_' in mods or 'quad_perm' in mods or 'wave_' in mods or '_dpp' in mn)
    R = lambda k: regs(ops[k]) if k < len(ops) else []
    if mn.startswith('v_mfma'):
        ins.kind = 'mfma'; ins.w = R(0); ins.srcab = R(1) + R(2); ins.srcc = R(3); ins.r = ins.srcab + ins.srcc
        ins.passes = 4 if '16x16' in mn else 8
    elif mn.startswith('v_'):
        ins.kind = 'valu'
        if mn.startswith('v_cmpx'):
            ins.w = R(0) + [('s', 'exec')]; ins.r = sum((R(k) for k in range(1, len(ops))), [])
        elif mn.startswith('v_cmp'):
            ins.w = R(0); ins.r = sum((R(k) for k in range(1, len(ops))), [])
        elif 'permlane' in mn and 'swap' in mn:
            ins.w = R(0) + R(1); ins.r = R(0) + R(1); ins.perm = True
        elif mn.startswith(('v_add_co', 'v_sub_co', 'v_addc_co', 'v_subb_co')):
            ins.w = R(0) + R(1); ins.r = sum((R(k) for k in range(2, len(ops))), [])
        else:
            ins.w = R(0); ins.r = sum((R(k) for k in range(1, len(ops))), [])
            if mn.startswith(('v_fmac', 'v_mac', 'v_accvgpr_mov')) or 'dot2c' in mn: ins.r += R(0)
            if mn.startswith('v_cndmask') and len(ops) == 3: ins.r += [('s', 'vcc')]
            if mn.startswith('v_writelane'): ins.r += R(0)
        if any(mn.startswith(x) for x in TRANS): ins.trans = True
    elif mn.startswith('ds_'):
        ins.kind = 'ds'
        if mn.startswith(('ds_read', 'ds_bpermute', 'ds_permute', 'ds_swizzle')):
            ins.w = R(0); ins.r = sum((R(k) for k in range(1, len(ops))), [])
        else:
            ins.r = sum((R(k) for k in range(len(ops))), []); ins.data = sum((R(k) for k in range(1, len(ops))), [])
    elif mn.startswith(('buffer_', 'global_')):
        ins.kind = 'vmem'
        toks = rest.replace(',', ' ').split()
        lds = 'lds' in toks or 'load_lds' in mn
        if mn.startswith('buffer_inv') or mn.startswith('buffer_wbl2'):
            pass
        elif mn.startswith('buffer_load'):
            if lds: ins.r = sum((R(k) for k in range(len(ops))), []) + [('s', 'm0')]; ins.lds = True
            else: ins.w = R(0); ins.r = sum((R(k) for k in range(1, len(ops))), [])
        elif mn.startswith('buffer_store') or mn.startswith('buffer_atomic'):
            ins.r = sum((R(k) for k in range(len(ops))), []); ins.data = R(0)
            if 'atomic' in mn and 'sc0' in toks: ins.w = R(0)
            ins.wide = ('x4' in mn or 'x3' in mn)
        elif mn.startswith('global_load'):
            if lds: ins.r = sum((R(k) for k in range(len(ops))), []) + [('s', 'm0')]; ins.lds = True
            else: ins.w = R(0); ins.r = sum((R(k) for k in range(1, len(ops))), [])
        elif mn.startswith('global_store'):
            ins.r = sum((R(k) for k in range(len(ops))), []); ins.data = R(1); ins.wide = ('x4' in mn or 'x3' in mn)
        elif mn.startswith('global_atomic'):
            ins.r = sum((R(k) for k in range(len(ops))), [])
    elif mn.startswith('s_'):
        ins.kind = 'salu'
        if mn == 's_nop': ins.nop = int(ops[0], 0) + 1
        elif mn.startswith(('s_cmp', 's_waitcnt', 's_cbranch', 's_branch', 's_barrier', 's_setprio', 's_endpgm', 's_sleep')):
            ins.r = sum((R(k) for k in range(len(ops))), [])
        else:
            ins.w = R(0); ins.r = sum((R(k) for k in range(1, len(ops))), [])
            if 'saveexec' in mn: ins.w += [('s', 'exec')]
    return ins

def need(p, c):
    n = 0
    g = lambda x, a, d=False: getattr(x, a, d)
    pw = set(p.w); cr = set(c.r); cw = set(c.w)
    vw = {r for r in pw if r[0] in 'va'}
    sw = {r for r in pw if r[0] == 's'}
    if p.kind == 'valu':
        if vw & cr:
            if c.kind == 'mfma': n = max(n, 2)
            if g(c, 'perm'): n = max(n, 2)
            if c.kind == 'valu' and c.dpp: n = max(n, 2)
            if c.mn.startswith(('v_readlane', 'v_readfirstlane')): n = max(n, 1)
            if g(p, 'trans') and c.kind in ('valu', 'mfma', 'vmem', 'ds') and not g(c, 'trans'): n = max(n, 1)
        if sw & cr:
            if c.kind == 'vmem': n = max(n, 5)
            if c.kind == 'valu': n = max(n, 2)
            if c.mn.startswith(('v_readlane', 'v_writelane')): n = max(n, 4)
        if ('s', 'exec') in sw:
            if c.kind == 'mfma': n = max(n, 4)
            if c.kind == 'valu' and c.dpp: n = max(n, 5)
            if g(c, 'perm') or c.mn.startswith(('v_readlane', 'v_readfirstlane', 'v_writelane')): n = max(n, 4)
    if p.kind == 'salu' and ('s', 'm0') in sw and g(c, 'lds'): n = max(n, 1)
    if p.kind == 'mfma':
        ps = p.passes
        if c.kind == 'mfma':
            if pw & set(c.srcab): n = max(n, {4: 8, 8: 12}[ps])
            if pw & set(c.srcc):
                if set(c.srcc) == pw and c.passes == ps: pass
                else: n = max(n, {4: 6, 8: 10}[ps])
        elif c.kind in ('valu', 'ds', 'vmem'):
            if pw & (cr | cw): n = max(n, {4: 8, 8: 12}[ps])
        if c.kind == 'valu' and set(p.srcc) & cw: n = max(n, {4: 3, 8: 7}[ps])
    if p.kind == 'vmem' and g(p, 'wide') and c.kind in ('valu',) and set(p.data) & cw: n = max(n, 2)
    if p.kind == 'vmem' and g(p, 'wide') and c.kind in ('ds', 'vmem') and set(p.data) & cw: n = max(n, 1)
    return n

def check_seq(instrs, fix=False, window=24):
    out = []
    for i, (idx, c) in enumerate(instrs):
        dist = 0
        worst = 0; wp = None
        for j in range(i - 1, max(-1, i - window), -1):
            p = instrs[j][1]
            req = need(p, c)
            if req > dist and req - dist > worst:
                worst = req - dist; wp = p
            dist += getattr(p, 'nop', 1)
            if dist >= 20: break
        if worst: out.append((idx, worst, wp))
    return out

def process(lines, fix=True, nofix_ranges=()):
    report = []
    for it in range(200):
        ins = [(i, parse(l)) for i, l in enumerate(lines)]
        seq = [(i, x) for i, x in ins if x is not None]
        viol = check_seq(seq)
        labels = {l.strip()[:-1]: i for i, l in enumerate(lines) if l.strip().endswith(':') and not l.strip().startswith(';')}
        for k, (i, x) in enumerate(seq):
            if x.mn.startswith(('s_cbranch', 's_branch')):
                tgt = x.ops[0]
                if tgt in labels:
                    t = labels[tgt]
                    after = [(a, b) for a, b in seq if a > t][:24]
                    before = seq[max(0, k - 23):k + 1]
                    v2 = check_seq(before + after)
                    first_after = len(before)
                    idxs = {a for a, b in after}
                    for (idx, w, p) in v2:
                        if idx in idxs and all(idx != q[0] for q in viol):
                            viol.append((idx, w, p))
        if not viol: return lines, report
        if not fix:
            return lines, [(lines[i].strip(), w, p.line.strip()) for i, w, p in viol]
        viol.sort(key=lambda z: z[0])
        idx, w, p = viol[0]
        newl = list(lines)
        for idx, w, p in sorted(viol, key=lambda z: -z[0]):
            report.append((lines[idx].strip(), w, p.line.strip()))
            newl.insert(idx, f"    s_nop {w-1}   ; hazard")
        lines = newl
    raise RuntimeError("hazard fix did not converge")
```

```python
import sys, json
from asmlib import *
import hazard

KN = "recurrent_scan__mha_block_cached__mixer_s_mlp__prompt"
MB = 1 << 20
WS_XN  = 0 * MB
WS_LN1 = 2 * MB
WS_H   = 4 * MB
WS_X1  = 6 * MB
WS_H3  = 8 * MB
WS_O   = 16 * MB
WS_ST  = 32 * MB
WS_CS3 = 33 * MB
KA = dict(x=0, k=8, v=16, wq=24, wo=32, bx=40, w1=48, w2=56, w3=64, w4=72, out=80, dbg=88, ws=96)

def load_ptr(A, sreg, name):
    A.e(f"s_load_dwordx2 {s(sreg,2)}, s[0:1], {KA[name]}")
def srd(A, d, p, size, off=0, offreg=None):
    if off or offreg is not None:
        if off:
            A.e(f"s_add_u32 {s(d)}, {s(p)}, {hex(off)}")
            A.e(f"s_addc_u32 {s(d+1)}, {s(p+1)}, 0")
            if offreg is not None:
                A.e(f"s_add_u32 {s(d)}, {s(d)}, {s(offreg)}")
                A.e(f"s_addc_u32 {s(d+1)}, {s(d+1)}, 0")
        else:
            A.e(f"s_add_u32 {s(d)}, {s(p)}, {s(offreg)}")
            A.e(f"s_addc_u32 {s(d+1)}, {s(p+1)}, 0")
    else:
        A.e(f"s_mov_b32 {s(d)}, {s(p)}")
        A.e(f"s_mov_b32 {s(d+1)}, {s(p+1)}")
    A.e(f"s_mov_b32 {s(d+2)}, {hex(size)}")
    A.e(f"s_mov_b32 {s(d+3)}, 0x20000")

def round_bf16(A, dst, src, tmp=None):
    A.e(f"v_cvt_pk_bf16_f32 {v(dst)}, {v(src)}, {v(src)}")
    A.e(f"v_and_b32 {v(dst)}, 0xffff0000, {v(dst)}")

def unpack8(A, f, p, n):
    for i in range(n):
        A.e(f"v_lshlrev_b32 {v(f+2*i)}, 16, {v(p+i)}")
        A.e(f"v_and_b32 {v(f+2*i+1)}, 0xffff0000, {v(p+i)}")

def red32(A, r, t):
    for n in (8, 4, 2, 1):
        A.e(f"v_add_f32 {v(r)}, {v(r)}, {v(r)} row_ror:{n} row_mask:0xf bank_mask:0xf")
    A.e(f"v_mov_b32 {v(t)}, {v(r)}")
    A.e(f"v_permlane16_swap_b32 {v(r)}, {v(t)}")
    A.e(f"v_add_f32 {v(r)}, {v(r)}, {v(t)}")

def ln16(A, P, F, T):
    unpack8(A, F, P, 8)
    sm, vr, t0, mb = T, T + 1, T + 2, T + 3
    A.e(f"v_add_f32 {v(sm)}, {v(F)}, {v(F+1)}")
    for i in range(2, 16):
        A.e(f"v_add_f32 {v(sm)}, {v(sm)}, {v(F+i)}")
    red32(A, sm, t0)
    A.e(f"v_mul_f32 {v(sm)}, {1.0/512:.10e}, {v(sm)}".replace(f"{1.0/512:.10e}", "0x3b000000"))
    A.e(f"v_sub_f32 {v(t0)}, {v(F)}, {v(sm)}")
    A.e(f"v_mul_f32 {v(vr)}, {v(t0)}, {v(t0)}")
    for i in range(1, 16):
        A.e(f"v_sub_f32 {v(t0)}, {v(F+i)}, {v(sm)}")
        A.e(f"v_fmac_f32 {v(vr)}, {v(t0)}, {v(t0)}")
    red32(A, vr, t0)
    A.e(f"v_mul_f32 {v(vr)}, 0x3b000000, {v(vr)}")
    round_bf16(A, mb, sm)
    round_bf16(A, vr, vr)
    A.e(f"v_add_f32 {v(vr)}, 0x3727c5ac, {v(vr)}")
    round_bf16(A, vr, vr)
    A.e(f"v_sqrt_f32 {v(vr)}, {v(vr)}")
    round_bf16(A, vr, vr)
    A.e(f"v_rcp_f32 {v(vr)}, {v(vr)}")
    for i in range(16):
        A.e(f"v_sub_f32 {v(F+i)}, {v(F+i)}, {v(mb)}")
    for i in range(8):
        A.e(f"v_cvt_pk_bf16_f32 {v(P+i)}, {v(F+2*i)}, {v(F+2*i+1)}")
    unpack8(A, F, P, 8)
    for i in range(16):
        A.e(f"v_mul_f32 {v(F+i)}, {v(F+i)}, {v(vr)}")
    for i in range(8):
        A.e(f"v_cvt_pk_bf16_f32 {v(P+i)}, {v(F+2*i)}, {v(F+2*i+1)}")

def gen_k0(A, name):
    kernel_begin(A, name)
    A.e("s_cmp_ge_u32 s2, 256")
    A.e(f"s_cbranch_scc1 {name}_end")
    load_ptr(A, 4, "x"); load_ptr(A, 6, "w3"); load_ptr(A, 8, "ws")
    A.e("v_and_b32 v1, 63, v0")
    A.e("v_lshrrev_b32 v2, 6, v0")
    A.e("v_lshrrev_b32 v3, 5, v1")
    A.e("v_lshl_add_u32 v3, v2, 1, v3")
    A.e("s_lshl_b32 s3, s2, 3")
    A.e("v_add_u32 v3, s3, v3")
    A.e("v_and_b32 v4, 31, v1")
    A.e("v_lshlrev_b32 v5, 10, v3")
    A.e("v_lshl_add_u32 v5, v4, 4, v5")
    A.e("s_waitcnt lgkmcnt(0)")
    srd(A, 12, 4, 2 * MB)
    srd(A, 16, 6, 512 * 1792 * 2)
    srd(A, 20, 8, 4 * MB)
    srd(A, 24, 8, 1792 * 4, off=WS_CS3)
    A.e("buffer_load_dwordx4 v[8:11], v5, s[12:15], 0 offen")
    A.e("buffer_load_dwordx4 v[12:15], v5, s[12:15], 0 offen offset:512")
    A.e("s_movk_i32 s28, 3584")
    A.e("v_mul_lo_u32 v6, v0, s28")
    A.e("s_lshl_b32 s29, s2, 4")
    A.e("v_add_u32 v6, s29, v6")
    A.e(f"s_mov_b32 s30, {256*3584}")
    A.e("buffer_load_dwordx4 v[40:43], v6, s[16:19], 0 offen")
    A.e("buffer_load_dwordx4 v[44:47], v6, s[16:19], s30 offen")
    A.e("v_lshrrev_b32 v7, 4, v3")
    A.e("v_lshlrev_b32 v7, 14, v7")
    A.e("v_lshrrev_b32 v16, 2, v4")
    A.e("v_lshl_add_u32 v7, v16, 10, v7")
    A.e("v_and_b32 v16, 15, v3")
    A.e("v_lshl_add_u32 v7, v16, 4, v7")
    A.e("v_and_b32 v16, 3, v4")
    A.e("v_lshl_add_u32 v7, v16, 8, v7")
    A.e("s_waitcnt vmcnt(2)")
    ln16(A, 8, 16, 32)
    A.e("s_mov_b32 s31, 8192")
    A.e("buffer_store_dwordx4 v[8:11], v7, s[20:23], 0 offen")
    A.e("buffer_store_dwordx4 v[12:15], v7, s[20:23], s31 offen")
    A.e("s_nop 1")
    ln16(A, 8, 16, 32)
    A.e("v_lshrrev_b32 v7, 4, v3")
    A.e("v_lshlrev_b32 v7, 14, v7")
    A.e("v_lshrrev_b32 v16, 2, v4")
    A.e("v_lshl_add_u32 v7, v16, 10, v7")
    A.e("v_and_b32 v16, 15, v3")
    A.e("v_lshl_add_u32 v7, v16, 4, v7")
    A.e("v_and_b32 v16, 1, v4")
    A.e("v_lshl_add_u32 v7, v16, 9, v7")
    A.e("v_bfe_u32 v16, v4, 1, 1")
    A.e("v_lshl_add_u32 v7, v16, 3, v7")
    A.e(f"s_mov_b32 s31, {hex(WS_LN1)}")
    A.e(f"s_mov_b32 s33, {hex(WS_LN1 + 8192)}")
    A.e("buffer_store_dwordx2 v[8:9], v7, s[20:23], s31 offen")
    A.e("buffer_store_dwordx2 v[10:11], v7, s[20:23], s31 offen offset:256")
    A.e("buffer_store_dwordx2 v[12:13], v7, s[20:23], s33 offen")
    A.e("buffer_store_dwordx2 v[14:15], v7, s[20:23], s33 offen offset:256")
    A.e("s_cmp_ge_u32 s2, 224")
    A.e(f"s_cbranch_scc1 {name}_end")
    A.e("s_waitcnt vmcnt(6)")
    unpack8(A, 16, 40, 8)
    for i in range(8):
        A.e(f"v_add_f32 {v(16+i)}, {v(16+i)}, {v(24+i)}")
    for n in (8, 4, 2, 1):
        for i in range(8):
            A.e(f"v_add_f32 {v(16+i)}, {v(16+i)}, {v(16+i)} row_ror:{n} row_mask:0xf bank_mask:0xf")
    for i in range(8): A.e(f"v_mov_b32 {v(24+i)}, {v(16+i)}")
    for i in range(8): A.e(f"v_permlane16_swap_b32 {v(16+i)}, {v(24+i)}")
    for i in range(8): A.e(f"v_add_f32 {v(16+i)}, {v(16+i)}, {v(24+i)}")
    for i in range(8): A.e(f"v_mov_b32 {v(24+i)}, {v(16+i)}")
    for i in range(8): A.e(f"v_permlane32_swap_b32 {v(16+i)}, {v(24+i)}")
    for i in range(8): A.e(f"v_add_f32 {v(16+i)}, {v(16+i)}, {v(24+i)}")
    A.e("v_lshlrev_b32 v2, 5, v2")
    A.e("ds_write_b128 v2, v[16:19]")
    A.e("ds_write_b128 v2, v[20:23] offset:16")
    A.e("s_waitcnt lgkmcnt(0)")
    A.e("s_barrier")
    A.e("v_and_b32 v1, 7, v0")
    A.e("v_lshlrev_b32 v1, 2, v1")
    A.e("ds_read_b32 v16, v1")
    A.e("ds_read_b32 v17, v1 offset:32")
    A.e("ds_read_b32 v18, v1 offset:64")
    A.e("ds_read_b32 v19, v1 offset:96")
    A.e("s_lshl_b32 s29, s2, 5")
    A.e("v_add_u32 v1, s29, v1")
    A.e("s_waitcnt lgkmcnt(0)")
    A.e("v_add_f32 v16, v16, v17")
    A.e("v_add_f32 v18, v18, v19")
    A.e("v_add_f32 v16, v16, v18")
    A.e("v_cmp_gt_u32 vcc, 8, v0")
    A.e("s_and_saveexec_b64 s[34:35], vcc")
    A.e(f"s_cbranch_execz {name}_end")
    A.e("buffer_store_dword v16, v1, s[24:27], 0 offen")
    A.label(f"{name}_end")
    A.e("s_endpgm")

class Tracker:
    def __init__(self, A, name, maxv):
        self.A, self.name, self.maxv = A, name, maxv
        self.ops = []
    def issue(self, tag):
        self.ops.append(tag)
    def count_after(self, tag):
        idx = [i for i, t in enumerate(self.ops) if t == tag]
        if not idx: return None
        return len(self.ops) - 1 - idx[-1]
    def waitstr(self, *tags):
        ns = [self.count_after(t) for t in tags]
        ns = [n for n in ns if n is not None]
        if not ns: return None
        n = min(ns)
        self.ops = self.ops[len(self.ops) - n:] if n > 0 else []
        assert n <= self.maxv, (self.name, n)
        return f"s_waitcnt {self.name}({n})"
    def wait(self, *tags):
        w = self.waitstr(*tags)
        if w: self.A.e(w)

V_LANE = 1
V_KA   = 4
V_VA   = 8
V_KD   = 16
V_VD   = 17
V_T    = 18
V_S    = 32
V_P    = 96
V_NEG  = 128
V_L    = 144
V_ONE  = 160
V_Q    = 164
V_X    = 228
A_O    = 0
A_K    = 192
A_V    = 224
LDS_K  = 0
LDS_V  = 65536
LDS_FLAG = 131072
QSCALE = 1.4426950408889634 / (128 ** 0.5)
import struct
def f2u(f): return struct.unpack("<I", struct.pack("<f", f))[0]

S_WAVE = 3
SRD_K, SRD_V, SRD_W, SRD_X, SRD_O = 8, 12, 16, 20, 24
S_KOFF, S_VOFF, S_M0K, S_M0V, S_CNT, S_T = 28, 29, 30, 31, 32, 33

def Sreg(buf, ks, qs): return V_S + 32 * buf + 16 * ks + 4 * qs
def Preg(buf, qs): return V_P + 16 * buf + 4 * qs
def Oreg(dt, qs): return A_O + 16 * dt + 4 * qs
def Qreg(qs, ds): return V_Q + 16 * qs + 4 * ds
MF = "v_mfma_f32_16x16x32_bf16"

def k_read(fr, slot):
    ks, ds = fr >> 2, fr & 3
    return f"ds_read_b128 {a(A_K + 4*fr, 4)}, {v(V_KA + ds)} offset:{8192*slot + 1024*ks}"
def v_read(dt, jh, slot, addr=V_VA, dst=A_V):
    return f"ds_read_b64_tr_b16 {a(dst + 4*dt + 2*jh, 2)}, {v(addr + dt)} offset:{8192*slot + 1024*jh}"

KINDS = "".join(["ec", "ec", "es", "em"] * 4) + "".join(["ec", "ec", "es", "e."] * 4) + "...."

def attn_stage(A, n, do_qk=True, do_pv=True, do_sm=True, kread_hi=True, kread_lo=True, dma=True, barrier=None, vm=16, first_cvt=True, tail_cvt=False):
    cur, nxt = n & 1, (n + 1) & 1
    prv = nxt
    pre = [[] for _ in range(68)]; post = [[] for _ in range(68)]
    reads = []
    if kread_hi: reads += [(('K', 4 + j), k_read(4 + j, (n + 1) & 7)) for j in range(4)]
    else: reads += [None] * 4
    if do_pv:
        for dt in range(8):
            for jh in range(2): reads.append((('V', dt), v_read(dt, jh, (n - 1) & 7)))
    else: reads += [None] * 16
    if kread_lo: reads += [(('K', j), k_read(j, (n + 2) & 7)) for j in range(4)]
    else: reads += [None] * 4
    exps = []; cvts = []
    for qs in range(4):
        for ks in range(2):
            for r in range(4): exps.append(Sreg(cur, ks, qs) + r)
    for qs in range(4):
        for ks in range(2):
            for h in range(2):
                cvts.append((Preg(cur, qs) + 2 * ks + h, Sreg(cur, ks, qs) + 2 * h))
    pc = (Preg(prv, 3) + 3, Sreg(prv, 1, 3) + 2)
    cv = ([pc] if first_cvt else [None]) + (cvts[:15] if do_sm else [None] * 15)
    ne = nc = nr = nd = 0
    rd_gap = {}
    for g, k in enumerate(KINDS):
        if k == "e":
            if do_sm: post[g].append(f"v_exp_f32 {v(exps[ne])}, {v(exps[ne])}")
            ne += 1
        if k in "cs":
            if reads[nr] is not None:
                pre[g].append(reads[nr][1]); rd_gap.setdefault(reads[nr][0], []).append(g)
            nr += 1
        if k == "c":
            if cv[nc] is not None:
                post[g].append(f"v_cvt_pk_bf16_f32 {v(cv[nc][0])}, {v(cv[nc][1])}, {v(cv[nc][1]+1)}")
            nc += 1
        if k == "m":
            if dma:
                if nd < 2: pre[g].append(f"buffer_load_dwordx4 {v(V_KD)}, {s(SRD_K,4)}, {s(S_KOFF)} offen offset:{1024*nd} lds")
                else: pre[g].append(f"buffer_load_dwordx4 {v(V_VD)}, {s(SRD_V,4)}, {s(S_VOFF)} offen offset:{1024*(nd-2)} lds")
            nd += 1
    assert ne == 32 and nc == 16 and nr == 24
    if tail_cvt and do_sm:
        post[65].append(f"v_cvt_pk_bf16_f32 {v(cvts[15][0])}, {v(cvts[15][1])}, {v(cvts[15][1]+1)}")
    if dma:
        pre[4].append(f"s_add_u32 m0, {s(S_M0K)}, {8192*((n+7)&7)}")
        pre[20].append(f"s_add_u32 m0, {s(S_M0V)}, {8192*((n+5)&7)}")
        pre[36].append(f"s_add_u32 {s(S_KOFF)}, {s(S_KOFF)}, 8192")
        pre[40].append(f"s_add_u32 {s(S_VOFF)}, {s(S_VOFF)}, 8192")
    if barrier is None: barrier = (n % 2 == 0)
    if barrier:
        pre[48].append(f"s_waitcnt vmcnt({vm})")
        pre[52].append("s_barrier")
    order = []
    for g in range(68):
        for x in pre[g]:
            if x.startswith("ds_read"):
                tag = [t for t, gs in rd_gap.items() if g in gs][0]
                order.append((g, tag))
    def add_wait(tag, before_gap):
        wg = before_gap - 2
        if wg >= 0:
            last = max(i for i, (g, t) in enumerate(order) if t == tag)
            assert order[last][0] < wg, (tag, order[last], wg)
            cnt = sum(1 for i, (g, t) in enumerate(order) if i > last and g < wg)
            pre[wg].insert(0, f"s_waitcnt lgkmcnt({cnt})")
    if do_qk and kread_hi:
        for j in range(4): add_wait(('K', 4 + j), 16 + 4 * j)
    if do_pv:
        for dt in range(8): add_wait(('V', dt), 32 + 4 * dt)
    if kread_lo:
        last = max(i for i, (g, t) in enumerate(order) if t == ('K', 0))
        cnt = sum(1 for i, (g, t) in enumerate(order) if i > last)
        pre[66].insert(0, f"s_waitcnt lgkmcnt({cnt})")
    if do_qk:
        for j in range(1, 4):
            wg = 4 * j - 2
            cnt = (3 - j) + sum(1 for (g, t) in order if g < wg)
            pre[wg].insert(0, f"s_waitcnt lgkmcnt({cnt})")
    for g in range(68):
        if g < 32:
            if do_qk:
                fr, qs = g >> 2, g & 3
                ks, ds = fr >> 2, fr & 3
                D = v(Sreg(nxt, ks, qs), 4)
                C = v(V_NEG + 4 * qs, 4) if ds == 0 else D
                A.e(f"{MF} {D}, {a(A_K + 4*fr, 4)}, {v(Qreg(qs, ds), 4)}, {C}")
        elif g < 64:
            if do_pv:
                dt, qs = (g - 32) >> 2, g & 3
                D = a(Oreg(dt, qs), 4)
                A.e(f"{MF} {D}, {a(A_V + 4*dt, 4)}, {v(Preg(prv, qs), 4)}, {D}")
        else:
            if do_pv:
                qs = g - 64
                D = v(V_L + 4 * qs, 4)
                A.e(f"{MF} {D}, {v(V_ONE, 4)}, {v(Preg(prv, qs), 4)}, {D}")
        for x in pre[g]: A.e(x)
        for x in post[g]: A.e(x)

def wq_slot(j):
    grp, i = j >> 2, j & 3
    return [LDS_K + 8192 * i, LDS_V + 8192 * i, LDS_K + 8192 * (4 + i), LDS_V + 8192 * (4 + i)][grp]

def attn_setup(A, name):
    A.e("s_cmp_ge_u32 s2, 256")
    A.e(f"s_cbranch_scc1 {name}_end")
    load_ptr(A, 4, "k"); load_ptr(A, 6, "v"); load_ptr(A, 34, "wq"); load_ptr(A, 36, "ws")
    A.e(f"v_and_b32 {v(V_LANE)}, 63, v0")
    A.e("v_lshrrev_b32 v2, 6, v0")
    A.e("s_nop 0")
    A.e(f"v_readfirstlane_b32 {s(S_WAVE)}, v2")
    A.e("s_and_b32 s38, s2, 7"); A.e("s_lshl_b32 s38, s38, 2")
    A.e("s_lshr_b32 s39, s2, 3"); A.e("s_and_b32 s39, s39, 3"); A.e("s_add_u32 s38, s38, s39")
    A.e("s_lshr_b32 s39, s2, 5")
    L = V_LANE
    A.e(f"v_and_b32 v20, 15, {v(L)}")
    A.e(f"v_lshrrev_b32 v21, 4, {v(L)}")
    A.e("v_lshrrev_b32 v22, 2, v20")
    A.e("v_and_b32 v23, 3, v20")
    A.e("v_lshl_add_u32 v24, v22, 3, v23")
    A.e("v_lshlrev_b32 v24, 8, v24")
    A.e("v_xor_b32 v25, v21, v20")
    for ds in range(4):
        A.e(f"v_xor_b32 v26, {4*ds}, v25")
        A.e(f"v_lshl_add_u32 {v(V_KA+ds)}, v26, 4, v24")
    A.e("v_lshl_add_u32 v24, v21, 3, v22")
    A.e("v_lshlrev_b32 v24, 8, v24")
    A.e("v_lshl_add_u32 v24, v23, 3, v24")
    A.e("v_and_b32 v25, 1, v21")
    A.e("v_lshl_or_b32 v25, v25, 2, v22")
    for dt in range(8):
        A.e(f"v_xor_b32 v26, {dt}, v25")
        A.e(f"v_lshl_add_u32 v26, v26, 5, v24")
        A.e(f"v_add_u32 {v(V_VA+dt)}, {LDS_V}, v26")
        A.e(f"v_mov_b32 {v(V_NEG+dt)}, v26")
    A.e(f"s_lshl_b32 s40, {s(S_WAVE)}, 2")
    A.e("v_or_b32 v25, s40, v21")
    A.e("v_xor_b32 v25, v25, v20")
    A.e("v_lshlrev_b32 v25, 4, v25")
    A.e("v_lshl_add_u32 v25, v21, 8, v25")
    A.e(f"s_lshl_b32 s41, {s(S_WAVE)}, 11")
    A.e(f"v_add_u32 {v(V_KD)}, s41, v25")
    A.e(f"s_and_b32 s40, {s(S_WAVE)}, 1"); A.e("s_lshl_b32 s40, s40, 2")
    A.e("v_or_b32 v25, s40, v21")
    A.e("v_lshlrev_b32 v25, 1, v25")
    A.e("v_xor_b32 v25, v25, v20")
    A.e("v_lshlrev_b32 v25, 4, v25")
    A.e("v_lshl_add_u32 v26, v21, 8, v25")
    A.e(f"v_add_u32 {v(V_VD)}, s41, v26")
    A.e("v_lshl_add_u32 v27, v21, 13, v25")
    A.e(f"s_lshl_b32 s42, {s(S_WAVE)}, 16")
    A.e(f"v_add_u32 {v(V_T)}, s42, v27")
    A.e(f"s_add_u32 {s(S_M0K)}, s41, {LDS_K}")
    A.e(f"s_add_u32 {s(S_M0V)}, s41, {LDS_V}")
    A.e("s_waitcnt lgkmcnt(0)")
    A.e("s_lshl_b32 s40, s38, 19")
    srd(A, SRD_K, 4, 524288, offreg=40)
    srd(A, SRD_V, 6, 524288, offreg=40)
    A.e("s_lshl_b32 s40, s38, 8")
    A.e(f"s_add_u32 {s(SRD_W)}, s34, s40"); A.e(f"s_addc_u32 {s(SRD_W+1)}, s35, 0")
    A.e(f"s_sub_u32 {s(SRD_W+2)}, {hex(512*4096*2)}, s40"); A.e(f"s_mov_b32 {s(SRD_W+3)}, 0x20000")
    A.e("s_lshl_b32 s40, s39, 4"); A.e(f"s_lshl_b32 s41, {s(S_WAVE)}, 2"); A.e("s_add_u32 s40, s40, s41")
    A.e("s_lshl_b32 s41, s40, 14")
    srd(A, SRD_X, 36, 65536, off=WS_XN, offreg=41)
    A.e("s_lshl_b32 s41, s40, 17"); A.e("s_lshl_b32 s42, s38, 12"); A.e("s_add_u32 s41, s41, s42")
    srd(A, SRD_O, 36, 4 * 131072, off=WS_O, offreg=41)
    A.e(f"v_lshlrev_b32 {v(V_T+1)}, 4, {v(L)}")
    for i in range(4): A.e(f"v_mov_b32 {v(V_ONE+i)}, 0x3f803f80")

def attn_qproj(A, vm):
    XR = V_S
    NX = 6
    def dmaW(j):
        for jj in range(2):
            A.e(f"s_add_u32 m0, {s(S_M0K)}, {wq_slot(j) + 1024*jj}")
            A.e(f"s_mov_b32 {s(S_T)}, {(32*j + 4*jj) * 8192}")
            A.e(f"buffer_load_dwordx4 {v(V_T)}, {s(SRD_W,4)}, {s(S_T)} offen lds")
            vm.issue(('W', j))
    def loadX(j):
        for qs in range(4):
            off = qs * 16384 + j * 1024
            A.e(f"s_mov_b32 {s(S_T)}, {off}")
            A.e(f"buffer_load_dwordx4 {v(XR + 16*(j % NX) + 4*qs, 4)}, {v(V_T+1)}, {s(SRD_X,4)}, {s(S_T)} offen")
            vm.issue(('X', j))
    def dmaKV(kind, n):
        if kind == 'K':
            A.e(f"s_add_u32 m0, {s(S_M0K)}, {8192*(n & 7)}")
            A.e(f"s_mov_b32 {s(S_T)}, {8192*n}")
            for jj in range(2):
                A.e(f"buffer_load_dwordx4 {v(V_KD)}, {s(SRD_K,4)}, {s(S_T)} offen offset:{1024*jj} lds"); vm.issue(('K', n))
        else:
            A.e(f"s_add_u32 m0, {s(S_M0V)}, {8192*(n & 7)}")
            A.e(f"s_mov_b32 {s(S_T)}, {8192*n}")
            for jj in range(2):
                A.e(f"buffer_load_dwordx4 {v(V_VD)}, {s(SRD_V,4)}, {s(S_T)} offen offset:{1024*jj} lds"); vm.issue(('V', n))
    for p in range(3):
        dmaW(2*p); dmaW(2*p+1); loadX(2*p); loadX(2*p+1)
    for j in range(6, 16): dmaW(j)
    for i in range(128): A.e(f"v_accvgpr_write_b32 {a(A_O+i)}, 0")
    def wread(j, dt, jh):
        base = wq_slot(j)
        addr = V_NEG if base < LDS_V else V_VA
        off = base - (0 if base < LDS_V else LDS_V)
        dst = A_K + 32 * (j & 1)
        return f"ds_read_b64_tr_b16 {a(dst + 4*dt + 2*jh, 2)}, {v(addr + dt)} offset:{off + 1024*jh}"
    vm.wait(('W', 0))
    A.e("s_barrier")
    for dt in range(8):
        for jh in range(2): A.e(wread(0, dt, jh))
    for j in range(16):
        pre = [[] for _ in range(32)]
        if j % 2 == 0:
            need = [('W', x) for x in (j + 1, j + 2) if x < 16]
            w = vm.waitstr(*need, ('X', j), ('X', j + 1))
            if w: A.e(w)
            A.e("s_barrier")
            if j == 4:
                for n in range(4): dmaKV('K', n)
            if j == 8:
                for n in range(4): dmaKV('V', n)
            if j == 12:
                for n in range(4, 7): dmaKV('K', n)
        nread = 0
        if j + 1 < 16:
            for dt in range(8):
                for jh in range(2):
                    pre[2*(2*dt+jh)].append(wread(j + 1, dt, jh))
        for g in range(32):
            dt, qs = g >> 2, g & 3
            if qs == 0:
                issued_now = sum(len(pre[x]) for x in range(g)) if j + 1 < 16 else 0
                remaining_old = 16 - 2 * (dt + 1)
                cnt = min(15, remaining_old + issued_now)
                A.e(f"s_waitcnt lgkmcnt({cnt})")
            D = a(Oreg(dt, qs), 4)
            A.e(f"{MF} {D}, {a(A_K + 32*(j & 1) + 4*dt, 4)}, {v(XR + 16*(j % NX) + 4*qs, 4)}, {D}")
            for x in pre[g]: A.e(x)
        if j + NX < 16: loadX(j + NX)
    A.e("s_barrier")
    dmaKV('V', 4)
    A.e(f"s_mov_b32 {s(S_T)}, {hex(f2u(QSCALE))}")
    A.e("s_nop 4")
    T = V_S
    for qs in range(4):
        for ds in range(4):
            for h in range(2):
                for r in range(4):
                    A.e(f"v_accvgpr_read_b32 {v(T + 4*h + r)}, {a(Oreg(2*ds + h, qs) + r)}")
            for i in range(8): A.e(f"v_mul_f32 {v(T+i)}, {s(S_T)}, {v(T+i)}")
            q = Qreg(qs, ds)
            for i in range(4): A.e(f"v_cvt_pk_bf16_f32 {v(q+i)}, {v(T+2*i)}, {v(T+2*i+1)}")
            A.e(f"v_permlane32_swap_b32 {v(q)}, {v(q+2)}")
            A.e(f"v_permlane32_swap_b32 {v(q+1)}, {v(q+3)}")
            A.e(f"v_permlane16_swap_b32 {v(q)}, {v(q+2)}")
            A.e(f"v_permlane16_swap_b32 {v(q+1)}, {v(q+3)}")

def rowmax(A, qs, buf, dst, t):
    s0, s1 = Sreg(buf, 0, qs), Sreg(buf, 1, qs)
    A.e(f"v_max3_f32 {v(dst)}, {v(s0)}, {v(s0+1)}, {v(s0+2)}")
    A.e(f"v_max3_f32 {v(dst)}, {v(dst)}, {v(s0+3)}, {v(s1)}")
    A.e(f"v_max3_f32 {v(dst)}, {v(dst)}, {v(s1+1)}, {v(s1+2)}")
    A.e(f"v_max_f32 {v(dst)}, {v(dst)}, {v(s1+3)}")
    A.e(f"v_mov_b32 {v(t)}, {v(dst)}")
    A.e(f"v_permlane16_swap_b32 {v(dst)}, {v(t)}")
    A.e(f"v_max_f32 {v(dst)}, {v(dst)}, {v(t)}")
    A.e(f"v_mov_b32 {v(t)}, {v(dst)}")
    A.e(f"v_permlane32_swap_b32 {v(dst)}, {v(t)}")
    A.e(f"v_max_f32 {v(dst)}, {v(dst)}, {v(t)}")

def qk_plain(A, buf, slot):
    for fr in range(8): A.e(k_read(fr, slot))
    for fr in range(8):
        A.e(f"s_waitcnt lgkmcnt({7 - fr})")
        ks, ds = fr >> 2, fr & 3
        for qs in range(4):
            D = v(Sreg(buf, ks, qs), 4)
            A.e(f"{MF} {D}, {a(A_K + 4*fr, 4)}, {v(Qreg(qs, ds), 4)}, {D if ds else 0}")

def attn_epilogue_store(A):
    T = V_S
    for qs in range(4):
        A.e(f"v_rcp_f32 {v(V_X+qs)}, {v(V_L + 4*qs)}")
    for qs in range(4):
        for u in range(4):
            t = T + 12 * ((qs * 4 + u) & 3)
            for h in range(2):
                for r in range(4):
                    A.e(f"v_accvgpr_read_b32 {v(t + 4*h + r)}, {a(Oreg(2*u + h, qs) + r)}")
            for i in range(8): A.e(f"v_mul_f32 {v(t+i)}, {v(V_X+qs)}, {v(t+i)}")
            for i in range(4): A.e(f"v_cvt_pk_bf16_f32 {v(t+8+i)}, {v(t+2*i)}, {v(t+2*i+1)}")
            A.e(f"s_mov_b32 {s(S_T)}, {qs*131072 + u*1024}")
            A.e(f"buffer_store_dwordx4 {v(t+8,4)}, {v(V_T+1)}, {s(SRD_O,4)}, {s(S_T)} offen")

def gen_attn(A, name, stamp=False):
    kernel_begin(A, name)
    attn_setup(A, name)
    vm = Tracker(A, "vmcnt", 63)
    if stamp: A.e("s_memtime s[50:51]"); A.e("s_memrealtime s[60:61]")
    attn_qproj(A, vm)
    if stamp: A.e("s_memtime s[52:53]")
    vm.wait(('K', 0), ('K', 1))
    A.e("s_barrier")
    qk_plain(A, 0, 0)
    for j in range(4): A.e(k_read(j, 1))
    for i in range(128): A.e(f"v_accvgpr_write_b32 {a(A_O+i)}, 0")
    for i in range(16): A.e(f"v_mov_b32 {v(V_L+i)}, 0")
    for qs in range(4):
        m = V_X + qs
        rowmax(A, qs, 0, m, V_X + 4)
        for r in range(4): A.e(f"v_sub_f32 {v(V_NEG + 4*qs + r)}, 0, {v(m)}")
        for ks in range(2):
            for r in range(4):
                A.e(f"v_sub_f32 {v(Sreg(0, ks, qs) + r)}, {v(Sreg(0, ks, qs) + r)}, {v(m)}")
    A.e(f"s_mov_b32 {s(S_KOFF)}, {8192*7}")
    A.e(f"s_mov_b32 {s(S_VOFF)}, {8192*5}")
    A.e("s_waitcnt lgkmcnt(3)")
    n_after = vm.count_after(('V', 3))
    if n_after is None: n_after = len(vm.ops)
    attn_stage(A, 0, do_pv=False, first_cvt=False, vm=n_after + 4)
    A.e(f"s_mov_b32 {s(S_CNT)}, 0")
    A.raw(".p2align 6")
    A.label(f"{name}_loop")
    for n in range(1, 9):
        attn_stage(A, n)
    A.e(f"s_add_u32 {s(S_CNT)}, {s(S_CNT)}, 1")
    A.e(f"s_cmp_lt_u32 {s(S_CNT)}, 7")
    A.e(f"s_cbranch_scc1 {name}_loop")
    for n in range(57, 64):
        last = (n == 63)
        attn_stage(A, n, do_qk=not last, kread_hi=not last, kread_lo=(n < 62), dma=(n <= 58),
                   barrier=(n % 2 == 0), vm={58: 16, 60: 8, 62: 0}.get(n, 0), tail_cvt=last)
    attn_stage(A, 64, do_qk=False, do_sm=False, kread_hi=False, kread_lo=False, dma=False, barrier=False, first_cvt=False)
    if stamp: A.e("s_memtime s[54:55]")
    A.e("s_nop 7")
    A.e(f"s_mov_b32 {s(S_T)}, 0x4e800000")
    A.e(f"v_cmp_nge_f32 vcc, {s(S_T)}, {v(V_L)}")
    A.e("s_mov_b64 s[40:41], vcc")
    for qs in range(1, 4):
        A.e(f"v_cmp_nge_f32 vcc, {s(S_T)}, {v(V_L + 4*qs)}")
        A.e("s_or_b64 s[40:41], s[40:41], vcc")
    A.e("s_cmp_lg_u64 s[40:41], 0")
    A.e("s_cselect_b32 s40, 1, 0")
    A.e(f"v_mov_b32 {v(V_X)}, s40")
    A.e(f"s_lshl_b32 s41, {s(S_WAVE)}, 2")
    A.e(f"s_add_u32 s41, s41, {LDS_FLAG}")
    A.e(f"v_mov_b32 {v(V_X+1)}, s41")
    A.e(f"ds_write_b32 {v(V_X+1)}, {v(V_X)}")
    A.e("s_waitcnt lgkmcnt(0) vmcnt(0)")
    A.e("s_barrier")
    A.e(f"v_mov_b32 {v(V_X+1)}, {LDS_FLAG}")
    A.e(f"ds_read_b128 {v(V_X+4,4)}, {v(V_X+1)}")
    A.e("s_waitcnt lgkmcnt(0)")
    A.e(f"v_or3_b32 {v(V_X)}, {v(V_X+4)}, {v(V_X+5)}, {v(V_X+6)}")
    A.e(f"v_or_b32 {v(V_X)}, {v(V_X)}, {v(V_X+7)}")
    A.e(f"v_readfirstlane_b32 s40, {v(V_X)}")
    A.e("s_cmp_lg_u32 s40, 0")
    A.e(f"s_cbranch_scc1 {name}_slow")
    A.label(f"{name}_store")
    attn_epilogue_store(A)
    if stamp:
        A.e("s_memtime s[56:57]"); A.e("s_memrealtime s[62:63]")
        A.e("s_waitcnt lgkmcnt(0) vmcnt(0)")
        load_ptr(A, 44, "dbg")
        A.e("s_sub_u32 s52, s52, s50"); A.e("s_sub_u32 s54, s54, s50"); A.e("s_sub_u32 s56, s56, s50"); A.e("s_sub_u32 s62, s62, s60")
        A.e("s_waitcnt lgkmcnt(0)")
        srd(A, 64, 44, 256)
        A.e("v_mov_b32 v40, s52"); A.e("v_mov_b32 v41, s54"); A.e("v_mov_b32 v42, s56"); A.e("v_mov_b32 v43, s62")
        A.e("s_and_b32 s46, s2, 3"); A.e("s_lshl_b32 s46, s46, 2"); A.e(f"s_add_u32 s46, s46, {s(S_WAVE)}"); A.e("s_lshl_b32 s46, s46, 4")
        A.e("v_mov_b32 v44, s46")
        A.e("s_cmp_ge_u32 s2, 4")
        A.e(f"s_cbranch_scc1 {name}_end")
        A.e("buffer_store_dwordx4 v[40:43], v44, s[64:67], 0 offen")
    A.e("s_waitcnt vmcnt(0)")
    A.label(f"{name}_end")
    A.e("s_endpgm")
    A.label(f"{name}_slow")
    for i in range(128): A.e(f"v_accvgpr_write_b32 {a(A_O+i)}, 0")
    for i in range(16): A.e(f"v_mov_b32 {v(V_L+i)}, 0")
    for qs in range(4): A.e(f"v_mov_b32 {v(V_NEG+qs)}, 0xff7fffff")
    A.e(f"s_mov_b32 {s(S_KOFF)}, 0")
    A.label(f"{name}_slowloop")
    A.e("s_barrier")
    A.e(f"s_mov_b32 m0, {s(S_M0K)}")
    A.e("s_nop 0")
    for jj in range(2): A.e(f"buffer_load_dwordx4 {v(V_KD)}, {s(SRD_K,4)}, {s(S_KOFF)} offen offset:{1024*jj} lds")
    A.e(f"s_mov_b32 m0, {s(S_M0V)}")
    A.e("s_nop 0")
    for jj in range(2): A.e(f"buffer_load_dwordx4 {v(V_VD)}, {s(SRD_V,4)}, {s(S_KOFF)} offen offset:{1024*jj} lds")
    A.e("s_waitcnt vmcnt(0)")
    A.e("s_barrier")
    qk_plain(A, 0, 0)
    for dt in range(8):
        for jh in range(2): A.e(v_read(dt, jh, 0))
    A.e("s_nop 7")
    for qs in range(4):
        mn, al = V_X, V_X + 1
        rowmax(A, qs, 0, mn, V_X + 4)
        A.e(f"v_max_f32 {v(mn)}, {v(mn)}, {v(V_NEG+qs)}")
        A.e(f"v_sub_f32 {v(al)}, {v(V_NEG+qs)}, {v(mn)}")
        A.e(f"v_exp_f32 {v(al)}, {v(al)}")
        A.e(f"v_mov_b32 {v(V_NEG+qs)}, {v(mn)}")
        for ks in range(2):
            for r in range(4):
                x = Sreg(0, ks, qs) + r
                A.e(f"v_sub_f32 {v(x)}, {v(x)}, {v(mn)}")
                A.e(f"v_exp_f32 {v(x)}, {v(x)}")
        for ks in range(2):
            for h in range(2):
                A.e(f"v_cvt_pk_bf16_f32 {v(Preg(0, qs) + 2*ks + h)}, {v(Sreg(0, ks, qs) + 2*h)}, {v(Sreg(0, ks, qs) + 2*h + 1)}")
        for r in range(4): A.e(f"v_mul_f32 {v(V_L + 4*qs + r)}, {v(al)}, {v(V_L + 4*qs + r)}")
        for dt in range(8):
            for r in range(4):
                A.e(f"v_accvgpr_read_b32 {v(V_X+8+r)}, {a(Oreg(dt, qs) + r)}")
            for r in range(4):
                A.e(f"v_mul_f32 {v(V_X+8+r)}, {v(al)}, {v(V_X+8+r)}")
            for r in range(4):
                A.e(f"v_accvgpr_write_b32 {a(Oreg(dt, qs) + r)}, {v(V_X+8+r)}")
    A.e("s_waitcnt lgkmcnt(0)")
    A.e("s_nop 3")
    for dt in range(8):
        for qs in range(4):
            D = a(Oreg(dt, qs), 4)
            A.e(f"{MF} {D}, {a(A_V + 4*dt, 4)}, {v(Preg(0, qs), 4)}, {D}")
    for qs in range(4):
        D = v(V_L + 4 * qs, 4)
        A.e(f"{MF} {D}, {v(V_ONE, 4)}, {v(Preg(0, qs), 4)}, {D}")
    A.e(f"s_add_u32 {s(S_KOFF)}, {s(S_KOFF)}, 8192")
    A.e(f"s_cmp_lt_u32 {s(S_KOFF)}, 524288")
    A.e(f"s_cbranch_scc1 {name}_slowloop")
    A.e("s_nop 7")
    A.e(f"s_branch {name}_store")


C_GELU1 = -2.0 * 1.4426950408889634 * 0.7978845608028654
C_GELU2 = C_GELU1 * 0.044715
def gelu_inplace(A, regs, tmp, vc2):
    for x, t in zip(regs, tmp): A.e(f"v_mul_f32 {v(t)}, {v(x)}, {v(x)}")
    for x, t in zip(regs, tmp): A.e(f"v_fmaak_f32 {v(t)}, {v(t)}, {v(vc2)}, {hex(f2u(C_GELU1))}")
    for x, t in zip(regs, tmp): A.e(f"v_mul_f32 {v(t)}, {v(t)}, {v(x)}")
    for x, t in zip(regs, tmp): A.e(f"v_exp_f32 {v(t)}, {v(t)}")
    for x, t in zip(regs, tmp): A.e(f"v_add_f32 {v(t)}, 1.0, {v(t)}")
    for x, t in zip(regs, tmp): A.e(f"v_rcp_f32 {v(t)}, {v(t)}")
    for x, t in zip(regs, tmp): A.e(f"v_mul_f32 {v(x)}, {v(x)}, {v(t)}")
def round_pairs(A, regs, tmp):
    for i in range(0, len(regs), 2):
        A.e(f"v_cvt_pk_bf16_f32 {v(tmp[i//2])}, {v(regs[i])}, {v(regs[i+1])}")
    for i in range(0, len(regs), 2):
        A.e(f"v_lshlrev_b32 {v(regs[i])}, 16, {v(tmp[i//2])}")
        A.e(f"v_and_b32 {v(regs[i+1])}, 0xffff0000, {v(tmp[i//2])}")

EA_LANE = 1
EA_RA   = 4
EA_WD   = 8
EA_BV   = 9
EA_T    = 13
EA_ACC  = 32
EA_WF   = 160
EA_B    = 192
EA_RING = 8
S_W = 3

def ea_setup(A, name, ptrs):
    A.e("s_cmp_ge_u32 s2, 256")
    A.e(f"s_cbranch_scc1 {name}_end")
    for (r, p) in ptrs: load_ptr(A, r, p)
    A.e(f"v_and_b32 {v(EA_LANE)}, 63, v0")
    A.e("v_lshrrev_b32 v2, 6, v0")
    A.e("s_nop 0")
    A.e(f"v_readfirstlane_b32 {s(S_W)}, v2")
    A.e("s_and_b32 s38, s2, 7"); A.e("s_lshl_b32 s38, s38, 2")
    A.e("s_lshr_b32 s39, s2, 3"); A.e("s_and_b32 s39, s39, 3"); A.e("s_add_u32 s38, s38, s39")
    A.e("s_lshr_b32 s39, s2, 5")
    L = EA_LANE
    A.e(f"v_and_b32 v20, 15, {v(L)}")
    A.e(f"v_lshrrev_b32 v21, 4, {v(L)}")
    A.e("v_lshrrev_b32 v22, 2, v20")
    A.e("v_and_b32 v23, 3, v20")
    A.e("v_lshl_add_u32 v24, v21, 2, v22")
    A.e("v_lshrrev_b32 v25, 1, v24")
    A.e("v_and_b32 v25, 3, v25")
    A.e("v_lshlrev_b32 v24, 7, v24")
    A.e("v_lshl_add_u32 v24, v23, 3, v24")
    A.e(f"s_lshl_b32 s40, {s(S_W)}, 15")
    A.e("v_add_u32 v24, s40, v24")
    for nt in range(4):
        A.e(f"v_xor_b32 v26, {nt}, v25")
        A.e(f"v_lshl_add_u32 {v(EA_RA+nt)}, v26, 5, v24")
    A.e(f"v_lshrrev_b32 v24, 3, {v(L)}")
    A.e(f"v_and_b32 v25, 7, {v(L)}")
    A.e("v_lshlrev_b32 v26, 1, v21")
    A.e("v_xor_b32 v25, v25, v26")
    A.e("v_lshlrev_b32 v25, 4, v25")
    A.e(f"v_lshl_add_u32 {v(EA_WD)}, v24, 10, v25")
    A.e(f"v_lshlrev_b32 {v(EA_T)}, 4, {v(L)}")

def ea_stream(A, steps, depth):
    vm = Tracker(A, "vmcnt", 63)
    n = len(steps)
    def breg(j, ms):
        k = (j % depth) * 16 + 4 * ms
        return v(EA_B + k, 4) if k < 64 else a(k - 64, 4)
    def issue(j):
        st = steps[j]
        for jj in range(4):
            A.e(f"s_add_u32 m0, s40, {4096*(j % EA_RING) + 1024*jj}")
            A.e(f"s_add_u32 s33, {s(st['wbase'])}, {st['woff'] + 8192*jj}")
            A.e(f"buffer_load_dwordx4 {v(EA_WD)}, {s(st['wsrd'],4)}, s33 offen lds")
            vm.issue(('W', j))
        for ms in range(4):
            A.e(f"s_mov_b32 s33, {st['boff'] + st['bms']*ms}")
            A.e(f"buffer_load_dwordx4 {breg(j, ms)}, {v(st['bv'][ms])}, {s(st['bsrd'],4)}, s33 offen")
            vm.issue(('B', j))
    def reads(j):
        out = []
        for nt in range(4):
            for jh in range(2):
                out.append(f"ds_read_b64_tr_b16 {v(EA_WF + 16*(j & 1) + 4*nt + 2*jh, 2)}, {v(EA_RA+nt)} offset:{4096*(j % EA_RING) + 2048*jh}")
        return out
    for j in range(min(depth, n)): issue(j)
    first = set()
    for st in steps:
        if st['acc'] not in first:
            first.add(st['acc'])
            for i in range(64): A.e(f"v_mov_b32 {v(st['acc']+i)}, 0")
    vm.wait(('W', 0))
    for r in reads(0): A.e(r)
    for j in range(n):
        st = steps[j]
        tags = [('B', j)] + ([('W', j + 1)] if j + 1 < n else [])
        vm.wait(*tags)
        rd = reads(j + 1) if j + 1 < n else []
        A.e(f"s_waitcnt lgkmcnt(0)")
        g = 0
        for nt in range(4):
            for ms in range(4):
                D = v(st['acc'] + 16*ms + 4*nt, 4)
                A.e(f"{MF} {D}, {v(EA_WF + 16*(j & 1) + 4*nt, 4)}, {breg(j, ms)}, {D}")
                if g % 2 == 0 and rd: A.e(rd.pop(0))
                g += 1
        if j + depth < n: issue(j + depth)

def ea_reduce(A, accs):
    A.e("s_nop 7")
    A.e("s_barrier")
    A.e(f"s_lshl_b32 s41, {s(S_W)}, 14")
    A.e(f"v_add_u32 v24, s41, {v(EA_T)}")
    for k, acc in enumerate(accs):
        for ms in range(4):
            for nt in range(4):
                A.e(f"ds_write_b128 v24, {v(acc + 16*ms + 4*nt, 4)} offset:{4096*ms + 1024*nt}")
        if k + 1 < len(accs): A.e("v_add_u32 v24, 0x10000, v24")
    A.e("s_waitcnt lgkmcnt(0)")
    A.e("s_barrier")
    A.e(f"s_lshl_b32 s41, {s(S_W)}, 12")
    A.e(f"v_add_u32 v24, s41, {v(EA_T)}")
    for k, acc in enumerate(accs):
        for src_w in range(4):
            for nt in range(4):
                A.e(f"ds_read_b128 {v(acc + 16*src_w + 4*nt, 4)}, v24 offset:{16384*src_w + 1024*nt}")
        if k + 1 < len(accs): A.e("v_add_u32 v24, 0x10000, v24")
    A.e("s_waitcnt lgkmcnt(0)")
    for acc in accs:
        for i in range(16):
            A.e(f"v_add_f32 {v(acc+i)}, {v(acc+i)}, {v(acc+16+i)}")
            A.e(f"v_add_f32 {v(acc+32+i)}, {v(acc+32+i)}, {v(acc+48+i)}")
        for i in range(16):
            A.e(f"v_add_f32 {v(acc+i)}, {v(acc+i)}, {v(acc+32+i)}")

def gen_g1(A, name):
    kernel_begin(A, name)
    ea_setup(A, name, [(4, "w1"), (6, "ws")])
    A.e("s_waitcnt lgkmcnt(0)")
    srd(A, 8, 4, 512 * 1024)
    A.e("s_lshl_b32 s41, s38, 16")
    srd(A, 12, 6, 65536, off=WS_LN1, offreg=41)
    srd(A, 16, 6, 65536, off=WS_H, offreg=41)
    A.e(f"s_lshl_b32 s42, {s(S_W)}, 17"); A.e("s_lshl_b32 s43, s39, 7"); A.e("s_add_u32 s42, s42, s43")
    A.e(f"s_lshl_b32 s43, {s(S_W)}, 12")
    A.e(f"v_add_u32 {v(EA_BV)}, s43, {v(EA_T)}")
    steps = [dict(acc=EA_ACC, wsrd=8, wbase=42, woff=32*1024*j, bsrd=12, bv=[EA_BV]*4, boff=1024*j, bms=16384) for j in range(4)]
    ea_stream(A, steps, 4)
    ea_reduce(A, [EA_ACC])
    R = [EA_ACC + i for i in range(16)]; T = [EA_ACC + 16 + i for i in range(16)]
    A.e(f"v_mov_b32 v25, {hex(f2u(C_GELU2))}")
    round_pairs(A, R, T)
    gelu_inplace(A, R, T, 25)
    for i in range(8): A.e(f"v_cvt_pk_bf16_f32 {v(EA_ACC+32+i)}, {v(R[2*i])}, {v(R[2*i+1])}")
    A.e(f"s_lshl_b32 s41, {s(S_W)}, 14"); A.e("s_lshl_b32 s43, s39, 11"); A.e("s_add_u32 s41, s41, s43")
    A.e("s_add_u32 s43, s41, 1024")
    A.e(f"buffer_store_dwordx4 {v(EA_ACC+32,4)}, {v(EA_T)}, s[16:19], s41 offen")
    A.e(f"buffer_store_dwordx4 {v(EA_ACC+36,4)}, {v(EA_T)}, s[16:19], s43 offen")
    A.label(f"{name}_end")
    A.e("s_endpgm")

def gen_g2(A, name):
    kernel_begin(A, name)
    ea_setup(A, name, [(4, "w2"), (6, "ws")])
    A.e("s_waitcnt lgkmcnt(0)")
    srd(A, 8, 4, 512 * 1024)
    srd(A, 12, 6, 2 * MB, off=WS_H)
    A.e("s_lshl_b32 s41, s38, 16")
    srd(A, 16, 6, 65536, off=WS_X1, offreg=41)
    srd(A, 20, 6, 65536, off=WS_XN, offreg=41)
    srd(A, 24, 6, 2048 * 64, off=WS_ST)
    A.e(f"s_lshl_b32 s42, {s(S_W)}, 17"); A.e("s_lshl_b32 s43, s39, 7"); A.e("s_add_u32 s42, s42, s43")
    A.e(f"s_lshr_b32 s43, {s(S_W)}, 1"); A.e("s_add_u32 s43, s43, 1")
    A.e(f"s_and_b32 s44, {s(S_W)}, 1")
    A.e("s_sub_u32 s45, 0, s43")
    A.e("s_cmp_eq_u32 s44, 0")
    A.e("s_cselect_b32 s43, s45, s43")
    A.e("s_lshl_b32 s44, s38, 6"); A.e("s_add_u32 s43, s43, s44")
    A.e(f"s_lshl_b32 s44, {s(S_W)}, 12")
    for ms in range(4):
        A.e(f"v_add_u32 v24, s43, v20")
        if ms: A.e(f"v_add_u32 v24, {16*ms}, v24")
        A.e("v_lshrrev_b32 v25, 4, v24")
        A.e("v_lshlrev_b32 v25, 14, v25")
        A.e("v_and_b32 v26, 15, v24")
        A.e("v_lshl_add_u32 v25, v26, 4, v25")
        A.e("v_lshl_add_u32 v25, v21, 8, v25")
        A.e("v_add_u32 v25, s44, v25")
        A.e("v_cmp_gt_u32 vcc, 0x800, v24")
        A.e(f"v_mov_b32 v26, 0x80000000")
        A.e(f"v_cndmask_b32 {v(EA_BV+ms)}, v26, v25, vcc")
    steps = [dict(acc=EA_ACC, wsrd=8, wbase=42, woff=32*1024*j, bsrd=12, bv=[EA_BV+ms for ms in range(4)], boff=1024*j, bms=0) for j in range(4)]
    A.e("v_lshrrev_b32 v24, 1, v21")
    A.e("v_lshlrev_b32 v24, 8, v24")
    A.e("v_lshl_add_u32 v24, v20, 4, v24")
    A.e("v_and_b32 v25, 1, v21")
    A.e("v_lshl_add_u32 v24, v25, 3, v24")
    A.e(f"s_lshl_b32 s44, {s(S_W)}, 14"); A.e("s_lshl_b32 s45, s39, 11"); A.e("s_add_u32 s44, s44, s45")
    A.e("v_add_u32 v24, s44, v24")
    XR = 100
    for nt in range(4):
        A.e(f"buffer_load_dwordx2 {v(XR + 2*nt, 2)}, v24, s[20:23], 0 offen offset:{1024*(nt>>1) + 512*(nt&1)}")
    ea_stream(A, steps, 4)
    ea_reduce(A, [EA_ACC])
    R = [EA_ACC + i for i in range(16)]; T = [EA_ACC + 16 + i for i in range(16)]
    round_pairs(A, R, T)
    A.e("s_waitcnt vmcnt(0)")
    unpack8(A, EA_ACC + 16, XR, 8)
    for i in range(16): A.e(f"v_add_f32 {v(R[i])}, {v(R[i])}, {v(T[i])}")
    P = EA_ACC + 32
    for i in range(8): A.e(f"v_cvt_pk_bf16_f32 {v(P+i)}, {v(R[2*i])}, {v(R[2*i+1])}")
    A.e(f"s_lshl_b32 s41, {s(S_W)}, 14"); A.e("s_lshl_b32 s43, s39, 11"); A.e("s_add_u32 s41, s41, s43")
    A.e("s_add_u32 s43, s41, 1024")
    A.e(f"buffer_store_dwordx4 {v(P,4)}, {v(EA_T)}, s[16:19], s41 offen")
    A.e(f"buffer_store_dwordx4 {v(P+4,4)}, {v(EA_T)}, s[16:19], s43 offen")
    unpack8(A, EA_ACC, P, 8)
    A.e(f"v_add_f32 v26, {v(R[0])}, {v(R[1])}")
    A.e(f"v_mul_f32 v27, {v(R[0])}, {v(R[0])}")
    A.e(f"v_fmac_f32 v27, {v(R[1])}, {v(R[1])}")
    for i in range(2, 16):
        A.e(f"v_add_f32 v26, v26, {v(R[i])}")
        A.e(f"v_fmac_f32 v27, {v(R[i])}, {v(R[i])}")
    for (sw) in ("16", "32"):
        A.e("v_mov_b32 v28, v26"); A.e("v_mov_b32 v29, v27")
        A.e(f"v_permlane{sw}_swap_b32 v26, v28"); A.e(f"v_permlane{sw}_swap_b32 v27, v29")
        A.e("v_add_f32 v26, v26, v28"); A.e("v_add_f32 v27, v27, v29")
    A.e("s_lshl_b32 s41, s38, 6"); A.e(f"s_lshl_b32 s43, {s(S_W)}, 4"); A.e("s_add_u32 s41, s41, s43")
    A.e("v_add_u32 v24, s41, v20")
    A.e("v_lshlrev_b32 v24, 6, v24")
    A.e("s_lshl_b32 s43, s39, 3")
    A.e("v_add_u32 v24, s43, v24")
    A.e(f"v_cmp_gt_u32 vcc, 16, {v(EA_LANE)}")
    A.e("s_and_saveexec_b64 s[46:47], vcc")
    A.e("buffer_store_dwordx2 v[26:27], v24, s[24:27], 0 offen")
    A.label(f"{name}_end")
    A.e("s_endpgm")

def gen_g3(A, name):
    kernel_begin(A, name)
    A.e("s_lshr_b32 s39, s2, 4")
    A.e("s_cmp_ge_u32 s39, 14")
    A.e(f"s_cbranch_scc1 {name}_end")
    load_ptr(A, 4, "w3"); load_ptr(A, 6, "ws")
    A.e("v_and_b32 v1, 63, v0")
    A.e("v_lshrrev_b32 v2, 6, v0")
    A.e("s_nop 0")
    A.e(f"v_readfirstlane_b32 {s(S_W)}, v2")
    A.e("s_and_b32 s38, s2, 7"); A.e("s_lshl_b32 s38, s38, 1")
    A.e("s_lshr_b32 s40, s2, 3"); A.e("s_and_b32 s40, s40, 1"); A.e("s_add_u32 s38, s38, s40")
    A.e("v_and_b32 v20, 15, v1")
    A.e("v_lshrrev_b32 v21, 4, v1")
    A.e("v_lshrrev_b32 v22, 2, v20")
    A.e("v_and_b32 v23, 3, v20")
    A.e("v_lshl_add_u32 v24, v21, 2, v22")
    A.e("v_and_b32 v25, 7, v24")
    A.e("v_lshlrev_b32 v24, 8, v24")
    A.e("v_lshl_add_u32 v24, v23, 3, v24")
    RA = 4
    for nt in range(8):
        A.e(f"v_xor_b32 v26, {nt}, v25")
        A.e(f"v_lshl_add_u32 {v(RA+nt)}, v26, 5, v24")
    RA2 = 12
    for nt in range(8): A.e(f"v_add_u32 {v(RA2+nt)}, 0x10000, {v(RA+nt)}")
    A.e("s_movk_i32 s40, 3584")
    A.e(f"s_lshl_b32 s41, {s(S_W)}, 3")
    for jj in range(2):
        A.e(f"v_add_u32 v24, {4*jj}, v21")
        A.e("v_lshlrev_b32 v25, 1, v24")
        A.e("v_xor_b32 v25, v25, v20")
        A.e("v_lshlrev_b32 v25, 4, v25")
        A.e("v_add_u32 v24, s41, v24")
        A.e("v_mul_lo_u32 v24, v24, s40")
        A.e(f"v_add_u32 {v(28+jj)}, v24, v25")
    A.e("v_lshlrev_b32 v30, 4, v1")
    A.e("s_waitcnt lgkmcnt(0)")
    A.e("s_lshl_b32 s40, s39, 8")
    A.e("s_add_u32 s8, s4, s40"); A.e("s_addc_u32 s9, s5, 0"); A.e(f"s_sub_u32 s10, {hex(512*3584)}, s40"); A.e("s_mov_b32 s11, 0x20000")
    A.e("s_lshl_b32 s40, s38, 3"); A.e(f"s_lshl_b32 s41, {s(S_W)}, 1"); A.e("s_add_u32 s40, s40, s41")
    A.e("s_lshl_b32 s41, s40, 14")
    srd(A, 12, 6, 32768, off=WS_X1, offreg=41)
    A.e(f"s_mul_i32 s41, s40, {56*1024}")
    srd(A, 16, 6, 2 * 56 * 1024, off=WS_H3, offreg=41)
    srd(A, 20, 6, 2048 * 64, off=WS_ST)
    srd(A, 24, 6, 1792 * 4, off=WS_CS3)
    vm = Tracker(A, "vmcnt", 63)
    A.e(f"s_lshl_b32 s42, {s(S_W)}, 11")
    XB = 128
    def dmaW(j):
        for jj in range(2):
            A.e(f"s_add_u32 m0, s42, {8192*j + 1024*jj}")
            A.e(f"s_mov_b32 s33, {32*j*3584}")
            A.e(f"buffer_load_dwordx4 {v(28+jj)}, s[8:11], s33 offen lds"); vm.issue(('W', j))
    def loadX(j):
        for ms in range(2):
            A.e(f"s_mov_b32 s33, {ms*16384 + j*1024}")
            A.e(f"buffer_load_dwordx4 {v(XB + 8*j + 4*ms, 4)}, v30, s[12:15], s33 offen"); vm.issue(('X', j))
    for j in range(14):
        dmaW(j); loadX(j)
    ACC = 32
    WF = 96
    for i in range(64): A.e(f"v_mov_b32 {v(ACC+i)}, 0")
    def wread(j, nt, jh):
        base = 8192 * j
        addr, off = (RA, base) if base < 65536 else (RA2, base - 65536)
        return f"ds_read_b64_tr_b16 {a(32*(j & 1) + 4*nt + 2*jh, 2)}, {v(addr+nt)} offset:{off + 4096*jh}"
    vm.wait(('W', 0))
    A.e("s_barrier")
    for nt in range(8):
        for jh in range(2): A.e(wread(0, nt, jh))
    for j in range(16):
        if j % 2 == 0:
            need = [('W', x) for x in (j + 1, j + 2) if x < 16]
            vm.wait(*need, ('X', j), ('X', j + 1))
            A.e("s_barrier")
        if j + 14 < 16: dmaW(j + 14); loadX(j + 14)
        rd = [wread(j + 1, nt, jh) for nt in range(8) for jh in range(2)] if j + 1 < 16 else []
        issued = 0
        for nt in range(8):
            cnt = min(15, 16 - 2*(nt + 1) + issued)
            A.e(f"s_waitcnt lgkmcnt({cnt})")
            for ms in range(2):
                D = v(ACC + 32*ms + 4*nt, 4)
                A.e(f"{MF} {D}, {a(32*(j & 1) + 4*nt, 4)}, {v(XB + 8*j + 4*ms, 4)}, {D}")
                if rd: A.e(rd.pop(0)); issued += 1
    A.e("s_lshl_b32 s40, s38, 7"); A.e(f"s_lshl_b32 s41, {s(S_W)}, 5"); A.e("s_add_u32 s40, s40, s41")
    A.e("v_add_u32 v24, s40, v20")
    A.e("v_lshlrev_b32 v24, 6, v24")
    ST = 128
    for ms in range(2):
        for q in range(4):
            A.e(f"buffer_load_dwordx4 {v(ST + 16*ms + 4*q, 4)}, v24, s[20:23], 0 offen offset:{1024*ms + 16*q}")
    CS = 160
    A.e("s_lshl_b32 s40, s39, 9")
    A.e("v_lshlrev_b32 v25, 4, v21")
    A.e("v_add_u32 v25, s40, v25")
    for nt in range(8):
        A.e(f"buffer_load_dwordx4 {v(CS + 4*nt, 4)}, v25, s[24:27], 0 offen offset:{64*nt}")
    A.e("s_waitcnt vmcnt(0)")
    A.e(f"v_mov_b32 v27, {hex(f2u(C_GELU2))}")
    for ms in range(2):
        b = ST + 16 * ms
        sm, sq, mb, rs = 200, 201, 202, 203
        A.e(f"v_add_f32 {v(sm)}, {v(b)}, {v(b+2)}"); A.e(f"v_add_f32 {v(sq)}, {v(b+1)}, {v(b+3)}")
        for q in range(2, 8):
            A.e(f"v_add_f32 {v(sm)}, {v(sm)}, {v(b+2*q)}"); A.e(f"v_add_f32 {v(sq)}, {v(sq)}, {v(b+2*q+1)}")
        A.e(f"v_mul_f32 {v(sm)}, 0x3b000000, {v(sm)}")
        A.e(f"v_mul_f32 {v(sq)}, 0x3b000000, {v(sq)}")
        A.e(f"v_fma_f32 {v(sq)}, -{v(sm)}, {v(sm)}, {v(sq)}")
        A.e(f"v_max_f32 {v(sq)}, 0, {v(sq)}")
        round_bf16(A, mb, sm)
        round_bf16(A, sq, sq)
        A.e(f"v_add_f32 {v(sq)}, 0x3727c5ac, {v(sq)}")
        round_bf16(A, sq, sq)
        A.e(f"v_sqrt_f32 {v(sq)}, {v(sq)}")
        round_bf16(A, sq, sq)
        A.e(f"v_rcp_f32 {v(rs)}, {v(sq)}")
        for half in range(2):
            R = [ACC + 32*ms + 16*half + i for i in range(16)]
            T = [208 + i for i in range(16)]
            for i in range(16):
                A.e(f"v_fma_f32 {v(R[i])}, -{v(mb)}, {v(CS + 16*half + i)}, {v(R[i])}")
            for i in range(16): A.e(f"v_mul_f32 {v(R[i])}, {v(rs)}, {v(R[i])}")
            round_pairs(A, R, T)
            gelu_inplace(A, R, T, 27)
            P = 224 + 8 * half
            for i in range(8): A.e(f"v_cvt_pk_bf16_f32 {v(P+i)}, {v(R[2*i])}, {v(R[2*i+1])}")
            for u in range(2):
                A.e(f"s_lshl_b32 s40, s39, 12")
                A.e(f"s_add_u32 s40, s40, {ms*56*1024 + (2*half + u)*1024}")
                A.e(f"buffer_store_dwordx4 {v(P + 4*u, 4)}, v30, s[16:19], s40 offen")
    A.label(f"{name}_end")
    A.e("s_endpgm")

def gen_final(A, name):
    kernel_begin(A, name)
    ea_setup(A, name, [(4, "wo"), (6, "ws"), (34, "w4"), (36, "x"), (44, "out")])
    A.e("s_waitcnt lgkmcnt(0)")
    srd(A, 8, 4, 4096 * 1024)
    srd(A, 12, 34, 1792 * 1024)
    A.e("s_lshl_b32 s41, s38, 19")
    srd(A, 16, 6, 4 * 131072, off=WS_O, offreg=41)
    A.e(f"s_mul_i32 s41, s38, {4*56*1024}")
    srd(A, 20, 6, 4 * 56 * 1024, off=WS_H3, offreg=41)
    A.e("s_lshl_b32 s41, s38, 16")
    srd(A, 24, 6, 65536, off=WS_X1, offreg=41)
    srd(A, 28, 36, 2 * MB)
    srd(A, 48, 44, 2 * MB)
    A.e("s_lshl_b32 s43, s39, 7")
    A.e(f"s_lshl_b32 s42, {s(S_W)}, 20"); A.e("s_add_u32 s42, s42, s43")
    A.e(f"s_mul_i32 s45, {s(S_W)}, {448*1024}"); A.e("s_add_u32 s45, s45, s43")
    A.e(f"s_lshl_b32 s43, {s(S_W)}, 15")
    A.e(f"v_add_u32 {v(EA_BV)}, s43, {v(EA_T)}")
    A.e(f"s_mul_i32 s43, {s(S_W)}, {14*1024}")
    A.e(f"v_add_u32 {v(EA_BV+1)}, s43, {v(EA_T)}")
    A1, A2 = EA_ACC, EA_ACC + 64
    steps = [dict(acc=A1, wsrd=8, wbase=42, woff=32*1024*j, bsrd=16, bv=[EA_BV]*4, boff=1024*j, bms=131072) for j in range(32)]
    steps += [dict(acc=A2, wsrd=12, wbase=45, woff=32*1024*j, bsrd=20, bv=[EA_BV+1]*4, boff=1024*j, bms=56*1024) for j in range(14)]
    A.e(f"s_lshl_b32 s46, {s(S_W)}, 14"); A.e("s_lshl_b32 s47, s39, 11"); A.e("s_add_u32 s46, s46, s47")
    A.e("s_add_u32 s47, s46, 1024")
    A.e(f"buffer_load_dwordx4 {a(64,4)}, {v(EA_T)}, s[24:27], s46 offen")
    A.e(f"buffer_load_dwordx4 {a(68,4)}, {v(EA_T)}, s[24:27], s47 offen")
    A.e("s_lshl_b32 s46, s38, 6"); A.e(f"s_lshl_b32 s47, {s(S_W)}, 4"); A.e("s_add_u32 s46, s46, s47")
    A.e("v_add_u32 v14, s46, v20")
    A.e("v_lshlrev_b32 v14, 10, v14")
    A.e("v_lshl_add_u32 v14, v21, 3, v14")
    A.e("s_lshl_b32 s47, s39, 7")
    A.e("v_add_u32 v14, s47, v14")
    for nt in range(4):
        A.e(f"buffer_load_dwordx2 {a(72 + 2*nt, 2)}, v14, s[28:31], 0 offen offset:{32*nt}")
    ea_stream(A, steps, 7)
    ea_reduce(A, [A1, A2])
    Sr = [A1 + i for i in range(16)]; Hr = [A2 + i for i in range(16)]
    T = [A1 + 16 + i for i in range(16)]; U = [A2 + 16 + i for i in range(16)]
    round_pairs(A, Sr, T)
    round_pairs(A, Hr, T)
    for i in range(8): A.e(f"v_accvgpr_read_b32 {v(A1+32+i)}, {a(64+i)}")
    unpack8(A, T[0], A1 + 32, 8)
    for i in range(16): A.e(f"v_add_f32 {v(Hr[i])}, {v(Hr[i])}, {v(T[i])}")
    round_pairs(A, Hr, T)
    A.e(f"s_mov_b32 s33, {hex(f2u(-1.4426950408889634))}")
    for i in range(16): A.e(f"v_mul_f32 {v(T[i])}, s33, {v(Hr[i])}")
    for i in range(16): A.e(f"v_exp_f32 {v(T[i])}, {v(T[i])}")
    for i in range(16): A.e(f"v_add_f32 {v(T[i])}, 1.0, {v(T[i])}")
    for i in range(16): A.e(f"v_rcp_f32 {v(T[i])}, {v(T[i])}")
    for i in range(16): A.e(f"v_mul_f32 {v(Hr[i])}, {v(Hr[i])}, {v(T[i])}")
    round_pairs(A, Hr, T)
    for i in range(16): A.e(f"v_mul_f32 {v(Sr[i])}, {v(Sr[i])}, {v(Hr[i])}")
    round_pairs(A, Sr, T)
    for i in range(8): A.e(f"v_accvgpr_read_b32 {v(A1+32+i)}, {a(72+i)}")
    unpack8(A, T[0], A1 + 32, 8)
    for i in range(16): A.e(f"v_add_f32 {v(Sr[i])}, {v(Sr[i])}, {v(T[i])}")
    for i in range(8): A.e(f"v_cvt_pk_bf16_f32 {v(U[i])}, {v(Sr[2*i])}, {v(Sr[2*i+1])}")
    for nt in range(4):
        A.e(f"buffer_store_dwordx2 {v(U[2*nt], 2)}, v14, s[48:51], 0 offen offset:{32*nt}")
    A.label(f"{name}_end")
    A.e("s_endpgm")

def finish(A, kernels, launches, path, fix=True):
    hdr = []
    for (k, g, b, lds) in launches:
        hdr.append(f"; @launch kernel={k} grid=({g},1,1) block=({b},1,1) lds={lds}")
    lines, rep = hazard.process(A.lines, fix=fix)
    out = hdr + ['.amdgcn_target "amdgcn-amd-amdhsa--gfx950"'] + lines
    B = Asm()
    for (k, vg, sg, acc) in kernels: kernel_desc(B, k, vg, sg, acc)
    out += B.lines
    open(path, "w").write("\n".join(out) + "\n")
    return rep

if __name__ == "__main__":
    mode = sys.argv[1] if len(sys.argv) > 1 else "attn"
    path = sys.argv[2] if len(sys.argv) > 2 else "k_attn.s"
    A = Asm()
    if mode == "attn":
        gen_k0(A, "k0_kernel")
        gen_attn(A, "attn_kernel", stamp=True)
        rep = finish(A, [("k0_kernel", 64, 102, 64), ("attn_kernel", 512, 102, 256)],
                     [("k0_kernel", 256, 256, 1024), ("attn_kernel", 256, 256, 135168)], path)
    if mode == "all":
        stamp = len(sys.argv) > 3
        gen_k0(A, "k0_kernel"); gen_g1(A, "g1_kernel"); gen_g2(A, "g2_kernel"); gen_g3(A, "g3_kernel")
        gen_attn(A, "attn_kernel", stamp=stamp); gen_final(A, "final_kernel")
        rep = finish(A, [("k0_kernel", 64, 102, 64), ("g1_kernel", 512, 102, 256), ("g2_kernel", 512, 102, 256),
                         ("g3_kernel", 512, 102, 256), ("attn_kernel", 512, 102, 256), ("final_kernel", 512, 102, 256)],
                     [("k0_kernel", 256, 256, 1024), ("g1_kernel", 256, 256, 131072), ("g2_kernel", 256, 256, 131072),
                      ("g3_kernel", 256, 256, 131072), ("attn_kernel", 256, 256, 135168), ("final_kernel", 256, 256, 131072)], path)
    print("hazard fixes:", len(rep))
```

```python
import sys, json
from asmlib import *
import hazard

KN = "recurrent_scan__mha_block_cached__mixer_s_mlp__prompt"
MB = 1 << 20
WS_XN  = 0 * MB
WS_LN1 = 2 * MB
WS_H   = 4 * MB
WS_X1  = 6 * MB
WS_H3  = 8 * MB
WS_O   = 16 * MB
WS_ST  = 32 * MB
WS_CS3 = 33 * MB
KA = dict(x=0, k=8, v=16, wq=24, wo=32, bx=40, w1=48, w2=56, w3=64, w4=72, out=80, dbg=88, ws=96)

def load_ptr(A, sreg, name):
    A.e(f"s_load_dwordx2 {s(sreg,2)}, s[0:1], {KA[name]}")
def srd(A, d, p, size, off=0, offreg=None):
    if off or offreg is not None:
        if off:
            A.e(f"s_add_u32 {s(d)}, {s(p)}, {hex(off)}")
            A.e(f"s_addc_u32 {s(d+1)}, {s(p+1)}, 0")
            if offreg is not None:
                A.e(f"s_add_u32 {s(d)}, {s(d)}, {s(offreg)}")
                A.e(f"s_addc_u32 {s(d+1)}, {s(d+1)}, 0")
        else:
            A.e(f"s_add_u32 {s(d)}, {s(p)}, {s(offreg)}")
            A.e(f"s_addc_u32 {s(d+1)}, {s(p+1)}, 0")
    else:
        A.e(f"s_mov_b32 {s(d)}, {s(p)}")
        A.e(f"s_mov_b32 {s(d+1)}, {s(p+1)}")
    A.e(f"s_mov_b32 {s(d+2)}, {hex(size)}")
    A.e(f"s_mov_b32 {s(d+3)}, 0x20000")

def round_bf16(A, dst, src, tmp=None):
    A.e(f"v_cvt_pk_bf16_f32 {v(dst)}, {v(src)}, {v(src)}")
    A.e(f"v_and_b32 {v(dst)}, 0xffff0000, {v(dst)}")

def unpack8(A, f, p, n):
    for i in range(n):
        A.e(f"v_lshlrev_b32 {v(f+2*i)}, 16, {v(p+i)}")
        A.e(f"v_and_b32 {v(f+2*i+1)}, 0xffff0000, {v(p+i)}")

def red32(A, r, t):
    for n in (8, 4, 2, 1):
        A.e(f"v_add_f32 {v(r)}, {v(r)}, {v(r)} row_ror:{n} row_mask:0xf bank_mask:0xf")
    A.e(f"v_mov_b32 {v(t)}, {v(r)}")
    A.e(f"v_permlane16_swap_b32 {v(r)}, {v(t)}")
    A.e(f"v_add_f32 {v(r)}, {v(r)}, {v(t)}")

def ln16(A, P, F, T):
    unpack8(A, F, P, 8)
    sm, vr, t0, mb = T, T + 1, T + 2, T + 3
    A.e(f"v_add_f32 {v(sm)}, {v(F)}, {v(F+1)}")
    for i in range(2, 16):
        A.e(f"v_add_f32 {v(sm)}, {v(sm)}, {v(F+i)}")
    red32(A, sm, t0)
    A.e(f"v_mul_f32 {v(sm)}, {1.0/512:.10e}, {v(sm)}".replace(f"{1.0/512:.10e}", "0x3b000000"))
    A.e(f"v_sub_f32 {v(t0)}, {v(F)}, {v(sm)}")
    A.e(f"v_mul_f32 {v(vr)}, {v(t0)}, {v(t0)}")
    for i in range(1, 16):
        A.e(f"v_sub_f32 {v(t0)}, {v(F+i)}, {v(sm)}")
        A.e(f"v_fmac_f32 {v(vr)}, {v(t0)}, {v(t0)}")
    red32(A, vr, t0)
    A.e(f"v_mul_f32 {v(vr)}, 0x3b000000, {v(vr)}")
    round_bf16(A, mb, sm)
    round_bf16(A, vr, vr)
    A.e(f"v_add_f32 {v(vr)}, 0x3727c5ac, {v(vr)}")
    round_bf16(A, vr, vr)
    A.e(f"v_sqrt_f32 {v(vr)}, {v(vr)}")
    round_bf16(A, vr, vr)
    A.e(f"v_rcp_f32 {v(vr)}, {v(vr)}")
    for i in range(16):
        A.e(f"v_sub_f32 {v(F+i)}, {v(F+i)}, {v(mb)}")
    for i in range(8):
        A.e(f"v_cvt_pk_bf16_f32 {v(P+i)}, {v(F+2*i)}, {v(F+2*i+1)}")
    unpack8(A, F, P, 8)
    for i in range(16):
        A.e(f"v_mul_f32 {v(F+i)}, {v(F+i)}, {v(vr)}")
    for i in range(8):
        A.e(f"v_cvt_pk_bf16_f32 {v(P+i)}, {v(F+2*i)}, {v(F+2*i+1)}")

STAMP = False
def stamp(A, i):
    if STAMP: A.e(f"s_memtime {s(70 + 2*i, 2)}")
KIDX = {}
def stamp_dump(A, name, n):
    if not STAMP: return
    kidx = KIDX.setdefault(name, len(KIDX))
    A.e("s_waitcnt vmcnt(0)")
    A.e("s_memrealtime s[88:89]")
    A.e("s_load_dwordx2 s[90:91], s[0:1], 96")
    A.e("s_waitcnt lgkmcnt(0) vmcnt(0)")
    A.e(f"s_add_u32 s92, s90, {hex(40*MB + kidx*4096)}"); A.e("s_addc_u32 s93, s91, 0"); A.e("s_mov_b32 s94, 4096"); A.e("s_mov_b32 s95, 0x20000")
    A.e("v_mov_b32 v40, s86"); A.e("v_mov_b32 v41, s88")
    A.e("s_lshl_b32 s96, s2, 3"); A.e("v_mov_b32 v42, s96")
    A.e("v_cmp_eq_u32 vcc, 0, v0")
    A.e("s_and_saveexec_b64 s[98:99], vcc")
    A.e(f"s_cbranch_execz {name}_sd")
    A.e("buffer_store_dwordx2 v[40:41], v42, s[92:95], 0 offen")
    A.label(f"{name}_sd")
    A.e("s_mov_b64 exec, s[98:99]")
    A.e("s_load_dwordx2 s[90:91], s[0:1], 88")
    A.e("s_waitcnt lgkmcnt(0)")
    A.e("s_mov_b32 s92, s90"); A.e("s_mov_b32 s93, s91"); A.e("s_mov_b32 s94, 256"); A.e("s_mov_b32 s95, 0x20000")
    for i in range(8):
        if 0 < i < n: A.e(f"s_sub_u32 s96, {s(70+2*i)}, s70"); A.e(f"v_mov_b32 v{40+i}, s96")
        elif i == 0: A.e("s_sub_u32 s96, s88, s86"); A.e("v_mov_b32 v40, s96")
        else: A.e(f"v_mov_b32 v{40+i}, 0")
    A.e("v_lshrrev_b32 v48, 6, v0")
    A.e("s_and_b32 s96, s2, 1")
    A.e("v_lshl_add_u32 v48, s96, 2, v48")
    A.e("v_lshlrev_b32 v48, 5, v48")
    A.e("s_mov_b64 exec, 1")
    A.e("s_lshr_b32 s96, s2, 1")
    A.e("s_cmp_lg_u32 s96, 40")
    A.e(f"s_cbranch_scc1 {name}_end")
    A.e("buffer_store_dwordx4 v[40:43], v48, s[92:95], 0 offen")
    A.e("buffer_store_dwordx4 v[44:47], v48, s[92:95], 0 offen offset:16")
def stamp_start(A):
    if STAMP: A.e("s_memtime s[70:71]"); A.e("s_memrealtime s[86:87]")

def gen_k0(A, name):
    kernel_begin(A, name)
    stamp_start(A)
    A.e("s_cmp_ge_u32 s2, 256")
    A.e(f"s_cbranch_scc1 {name}_end")
    load_ptr(A, 4, "x"); load_ptr(A, 6, "w3"); load_ptr(A, 8, "ws")
    A.e("v_and_b32 v1, 63, v0")
    A.e("v_lshrrev_b32 v2, 6, v0")
    A.e("v_lshrrev_b32 v3, 5, v1")
    A.e("v_lshl_add_u32 v3, v2, 1, v3")
    A.e("s_lshl_b32 s3, s2, 3")
    A.e("v_add_u32 v3, s3, v3")
    A.e("v_and_b32 v4, 31, v1")
    A.e("v_lshlrev_b32 v5, 10, v3")
    A.e("v_lshl_add_u32 v5, v4, 4, v5")
    A.e("s_waitcnt lgkmcnt(0)")
    srd(A, 12, 4, 2 * MB)
    srd(A, 16, 6, 512 * 1792 * 2)
    srd(A, 20, 8, 4 * MB)
    srd(A, 24, 8, 1792 * 4, off=WS_CS3)
    A.e("buffer_load_dwordx4 v[8:11], v5, s[12:15], 0 offen")
    A.e("buffer_load_dwordx4 v[12:15], v5, s[12:15], 0 offen offset:512")
    A.e("s_movk_i32 s28, 3584")
    A.e("v_mul_lo_u32 v6, v0, s28")
    A.e("s_lshl_b32 s29, s2, 4")
    A.e("v_add_u32 v6, s29, v6")
    A.e(f"s_mov_b32 s30, {256*3584}")
    A.e("buffer_load_dwordx4 v[40:43], v6, s[16:19], 0 offen")
    A.e("buffer_load_dwordx4 v[44:47], v6, s[16:19], s30 offen")
    A.e("v_lshrrev_b32 v7, 4, v3")
    A.e("v_lshlrev_b32 v7, 14, v7")
    A.e("v_lshrrev_b32 v16, 2, v4")
    A.e("v_lshl_add_u32 v7, v16, 10, v7")
    A.e("v_and_b32 v16, 15, v3")
    A.e("v_lshl_add_u32 v7, v16, 4, v7")
    A.e("v_and_b32 v16, 3, v4")
    A.e("v_lshl_add_u32 v7, v16, 8, v7")
    A.e("s_waitcnt vmcnt(2)")
    ln16(A, 8, 16, 32)
    A.e("s_mov_b32 s31, 8192")
    A.e("buffer_store_dwordx4 v[8:11], v7, s[20:23], 0 offen")
    A.e("buffer_store_dwordx4 v[12:15], v7, s[20:23], s31 offen")
    A.e("s_nop 1")
    ln16(A, 8, 16, 32)
    A.e("v_lshrrev_b32 v7, 4, v3")
    A.e("v_lshlrev_b32 v7, 14, v7")
    A.e("v_lshrrev_b32 v16, 2, v4")
    A.e("v_lshl_add_u32 v7, v16, 10, v7")
    A.e("v_and_b32 v16, 15, v3")
    A.e("v_lshl_add_u32 v7, v16, 4, v7")
    A.e("v_and_b32 v16, 1, v4")
    A.e("v_lshl_add_u32 v7, v16, 9, v7")
    A.e("v_bfe_u32 v16, v4, 1, 1")
    A.e("v_lshl_add_u32 v7, v16, 3, v7")
    A.e(f"s_mov_b32 s31, {hex(WS_LN1)}")
    A.e(f"s_mov_b32 s33, {hex(WS_LN1 + 8192)}")
    A.e("buffer_store_dwordx2 v[8:9], v7, s[20:23], s31 offen")
    A.e("buffer_store_dwordx2 v[10:11], v7, s[20:23], s31 offen offset:256")
    A.e("buffer_store_dwordx2 v[12:13], v7, s[20:23], s33 offen")
    A.e("buffer_store_dwordx2 v[14:15], v7, s[20:23], s33 offen offset:256")
    A.e("s_cmp_ge_u32 s2, 224")
    A.e(f"s_cbranch_scc1 {name}_fin")
    A.e("s_waitcnt vmcnt(6)")
    unpack8(A, 16, 40, 8)
    for i in range(8):
        A.e(f"v_add_f32 {v(16+i)}, {v(16+i)}, {v(24+i)}")
    for n in (8, 4, 2, 1):
        for i in range(8):
            A.e(f"v_add_f32 {v(16+i)}, {v(16+i)}, {v(16+i)} row_ror:{n} row_mask:0xf bank_mask:0xf")
    for i in range(8): A.e(f"v_mov_b32 {v(24+i)}, {v(16+i)}")
    for i in range(8): A.e(f"v_permlane16_swap_b32 {v(16+i)}, {v(24+i)}")
    for i in range(8): A.e(f"v_add_f32 {v(16+i)}, {v(16+i)}, {v(24+i)}")
    for i in range(8): A.e(f"v_mov_b32 {v(24+i)}, {v(16+i)}")
    for i in range(8): A.e(f"v_permlane32_swap_b32 {v(16+i)}, {v(24+i)}")
    for i in range(8): A.e(f"v_add_f32 {v(16+i)}, {v(16+i)}, {v(24+i)}")
    A.e("v_lshlrev_b32 v2, 5, v2")
    A.e("ds_write_b128 v2, v[16:19]")
    A.e("ds_write_b128 v2, v[20:23] offset:16")
    A.e("s_waitcnt lgkmcnt(0)")
    A.e("s_barrier")
    A.e("v_and_b32 v1, 7, v0")
    A.e("v_lshlrev_b32 v1, 2, v1")
    A.e("ds_read_b32 v16, v1")
    A.e("ds_read_b32 v17, v1 offset:32")
    A.e("ds_read_b32 v18, v1 offset:64")
    A.e("ds_read_b32 v19, v1 offset:96")
    A.e("s_lshl_b32 s29, s2, 5")
    A.e("v_add_u32 v1, s29, v1")
    A.e("s_waitcnt lgkmcnt(0)")
    A.e("v_add_f32 v16, v16, v17")
    A.e("v_add_f32 v18, v18, v19")
    A.e("v_add_f32 v16, v16, v18")
    A.e("v_cmp_gt_u32 vcc, 8, v0")
    A.e("s_and_saveexec_b64 s[34:35], vcc")
    A.e(f"s_cbranch_execz {name}_fin")
    A.e("buffer_store_dword v16, v1, s[24:27], 0 offen")
    A.label(f"{name}_fin")
    A.e("s_mov_b64 exec, -1")
    stamp_dump(A, name, 1)
    A.label(f"{name}_end")
    A.e("s_endpgm")

class Tracker:
    def __init__(self, A, name, maxv):
        self.A, self.name, self.maxv = A, name, maxv
        self.ops = []
    def issue(self, tag):
        self.ops.append(tag)
    def count_after(self, tag):
        idx = [i for i, t in enumerate(self.ops) if t == tag]
        if not idx: return None
        return len(self.ops) - 1 - idx[-1]
    def waitstr(self, *tags):
        ns = [self.count_after(t) for t in tags]
        ns = [n for n in ns if n is not None]
        if not ns: return None
        n = min(ns)
        self.ops = self.ops[len(self.ops) - n:] if n > 0 else []
        assert n <= self.maxv, (self.name, n)
        return f"s_waitcnt {self.name}({n})"
    def wait(self, *tags):
        w = self.waitstr(*tags)
        if w: self.A.e(w)

V_LANE = 1
V_KA   = 4
V_VA   = 8
V_KD   = 16
V_VD   = 17
V_T    = 18
V_S    = 32
V_P    = 96
V_NEG  = 128
V_L    = 144
V_ONE  = 160
V_Q    = 164
V_X    = 228
A_O    = 0
A_K    = 192
A_V    = 224
LDS_K  = 0
LDS_V  = 65536
LDS_FLAG = 131072
QSCALE = 1.4426950408889634 / (128 ** 0.5)
import struct
def f2u(f): return struct.unpack("<I", struct.pack("<f", f))[0]

S_WAVE = 3
SRD_K, SRD_V, SRD_W, SRD_X, SRD_O = 8, 12, 16, 20, 24
S_KOFF, S_VOFF, S_M0K, S_M0V, S_CNT, S_T = 28, 29, 30, 31, 32, 33

def Sreg(buf, ks, qs): return V_S + 32 * buf + 16 * ks + 4 * qs
def Preg(buf, qs): return V_P + 16 * buf + 4 * qs
def Oreg(dt, qs): return A_O + 16 * dt + 4 * qs
def Qreg(qs, ds): return V_Q + 16 * qs + 4 * ds
MF = "v_mfma_f32_16x16x32_bf16"

def k_read(fr, slot):
    ks, ds = fr >> 2, fr & 3
    return f"ds_read_b128 {a(A_K + 4*fr, 4)}, {v(V_KA + ds)} offset:{8192*slot + 1024*ks}"
def v_read(dt, jh, slot, addr=V_VA, dst=A_V):
    return f"ds_read_b64_tr_b16 {a(dst + 4*dt + 2*jh, 2)}, {v(addr + dt)} offset:{8192*slot + 1024*jh}"

KINDS = "".join(["ec", "ec", "es", "em"] * 4) + "".join(["ec", "ec", "es", "e."] * 4) + "...."

def attn_stage(A, n, do_qk=True, do_pv=True, do_sm=True, kread_hi=True, kread_lo=True, dma=True, barrier=None, vm=16, first_cvt=True, tail_cvt=False):
    cur, nxt = n & 1, (n + 1) & 1
    prv = nxt
    pre = [[] for _ in range(68)]; post = [[] for _ in range(68)]
    reads = []
    if kread_hi: reads += [(('K', 4 + j), k_read(4 + j, (n + 1) & 7)) for j in range(4)]
    else: reads += [None] * 4
    if do_pv:
        for dt in range(8):
            for jh in range(2): reads.append((('V', dt), v_read(dt, jh, (n - 1) & 7)))
    else: reads += [None] * 16
    if kread_lo: reads += [(('K', j), k_read(j, (n + 2) & 7)) for j in range(4)]
    else: reads += [None] * 4
    exps = []; cvts = []
    for qs in range(4):
        for ks in range(2):
            for r in range(4): exps.append(Sreg(cur, ks, qs) + r)
    for qs in range(4):
        for ks in range(2):
            for h in range(2):
                cvts.append((Preg(cur, qs) + 2 * ks + h, Sreg(cur, ks, qs) + 2 * h))
    pc = (Preg(prv, 3) + 3, Sreg(prv, 1, 3) + 2)
    cv = ([pc] if first_cvt else [None]) + (cvts[:15] if do_sm else [None] * 15)
    ne = nc = nr = nd = 0
    rd_gap = {}
    for g, k in enumerate(KINDS):
        if k == "e":
            if do_sm: post[g].append(f"v_exp_f32 {v(exps[ne])}, {v(exps[ne])}")
            ne += 1
        if k in "cs":
            if reads[nr] is not None:
                pre[g].append(reads[nr][1]); rd_gap.setdefault(reads[nr][0], []).append(g)
            nr += 1
        if k == "c":
            if cv[nc] is not None:
                post[g].append(f"v_cvt_pk_bf16_f32 {v(cv[nc][0])}, {v(cv[nc][1])}, {v(cv[nc][1]+1)}")
            nc += 1
        if k == "m":
            if dma:
                if nd < 2: pre[g].append(f"buffer_load_dwordx4 {v(V_KD)}, {s(SRD_K,4)}, {s(S_KOFF)} offen offset:{1024*nd} lds")
                else: pre[g].append(f"buffer_load_dwordx4 {v(V_VD)}, {s(SRD_V,4)}, {s(S_VOFF)} offen offset:{1024*(nd-2)} lds")
            nd += 1
    assert ne == 32 and nc == 16 and nr == 24
    if tail_cvt and do_sm:
        post[65].append(f"v_cvt_pk_bf16_f32 {v(cvts[15][0])}, {v(cvts[15][1])}, {v(cvts[15][1]+1)}")
    if dma:
        pre[4].append(f"s_add_u32 m0, {s(S_M0K)}, {8192*((n+7)&7)}")
        pre[20].append(f"s_add_u32 m0, {s(S_M0V)}, {8192*((n+5)&7)}")
        pre[36].append(f"s_add_u32 {s(S_KOFF)}, {s(S_KOFF)}, 8192")
        pre[40].append(f"s_add_u32 {s(S_VOFF)}, {s(S_VOFF)}, 8192")
    if barrier is None: barrier = (n % 2 == 0)
    if barrier:
        pre[48].append(f"s_waitcnt vmcnt({vm})")
        pre[52].append("s_barrier")
    order = []
    for g in range(68):
        for x in pre[g]:
            if x.startswith("ds_read"):
                tag = [t for t, gs in rd_gap.items() if g in gs][0]
                order.append((g, tag))
    def add_wait(tag, before_gap):
        wg = before_gap - 2
        if wg >= 0:
            last = max(i for i, (g, t) in enumerate(order) if t == tag)
            assert order[last][0] < wg, (tag, order[last], wg)
            cnt = sum(1 for i, (g, t) in enumerate(order) if i > last and g < wg)
            pre[wg].insert(0, f"s_waitcnt lgkmcnt({cnt})")
    if do_qk and kread_hi:
        for j in range(4): add_wait(('K', 4 + j), 16 + 4 * j)
    if do_pv:
        for dt in range(8): add_wait(('V', dt), 32 + 4 * dt)
    if kread_lo:
        last = max(i for i, (g, t) in enumerate(order) if t == ('K', 0))
        cnt = sum(1 for i, (g, t) in enumerate(order) if i > last)
        pre[66].insert(0, f"s_waitcnt lgkmcnt({cnt})")
    if do_qk:
        for j in range(1, 4):
            wg = 4 * j - 2
            cnt = (3 - j) + sum(1 for (g, t) in order if g < wg)
            pre[wg].insert(0, f"s_waitcnt lgkmcnt({cnt})")
    for g in range(68):
        if g < 32:
            if do_qk:
                fr, qs = g >> 2, g & 3
                ks, ds = fr >> 2, fr & 3
                D = v(Sreg(nxt, ks, qs), 4)
                C = v(V_NEG + 4 * qs, 4) if ds == 0 else D
                A.e(f"{MF} {D}, {a(A_K + 4*fr, 4)}, {v(Qreg(qs, ds), 4)}, {C}")
        elif g < 64:
            if do_pv:
                dt, qs = (g - 32) >> 2, g & 3
                D = a(Oreg(dt, qs), 4)
                A.e(f"{MF} {D}, {a(A_V + 4*dt, 4)}, {v(Preg(prv, qs), 4)}, {D}")
        else:
            if do_pv:
                qs = g - 64
                D = v(V_L + 4 * qs, 4)
                A.e(f"{MF} {D}, {v(V_ONE, 4)}, {v(Preg(prv, qs), 4)}, {D}")
        for x in pre[g]: A.e(x)
        for x in post[g]: A.e(x)

def wq_slot(j):
    grp, i = j >> 2, j & 3
    return [LDS_K + 8192 * i, LDS_V + 8192 * i, LDS_K + 8192 * (4 + i), LDS_V + 8192 * (4 + i)][grp]

def attn_setup(A, name):
    A.e("s_cmp_ge_u32 s2, 256")
    A.e(f"s_cbranch_scc1 {name}_end")
    load_ptr(A, 4, "k"); load_ptr(A, 6, "v"); load_ptr(A, 34, "wq"); load_ptr(A, 36, "ws")
    A.e(f"v_and_b32 {v(V_LANE)}, 63, v0")
    A.e("v_lshrrev_b32 v2, 6, v0")
    A.e("s_nop 0")
    A.e(f"v_readfirstlane_b32 {s(S_WAVE)}, v2")
    A.e("s_and_b32 s38, s2, 7"); A.e("s_lshl_b32 s38, s38, 2")
    A.e("s_lshr_b32 s39, s2, 3"); A.e("s_and_b32 s39, s39, 3"); A.e("s_add_u32 s38, s38, s39")
    A.e("s_lshr_b32 s39, s2, 5")
    L = V_LANE
    A.e(f"v_and_b32 v20, 15, {v(L)}")
    A.e(f"v_lshrrev_b32 v21, 4, {v(L)}")
    A.e("v_lshrrev_b32 v22, 2, v20")
    A.e("v_and_b32 v23, 3, v20")
    A.e("v_lshl_add_u32 v24, v22, 3, v23")
    A.e("v_lshlrev_b32 v24, 8, v24")
    A.e("v_xor_b32 v25, v21, v20")
    for ds in range(4):
        A.e(f"v_xor_b32 v26, {4*ds}, v25")
        A.e(f"v_lshl_add_u32 {v(V_KA+ds)}, v26, 4, v24")
    A.e("v_lshl_add_u32 v24, v21, 3, v22")
    A.e("v_lshlrev_b32 v24, 8, v24")
    A.e("v_lshl_add_u32 v24, v23, 3, v24")
    A.e("v_and_b32 v25, 1, v21")
    A.e("v_lshl_or_b32 v25, v25, 2, v22")
    for dt in range(8):
        A.e(f"v_xor_b32 v26, {dt}, v25")
        A.e(f"v_lshl_add_u32 v26, v26, 5, v24")
        A.e(f"v_add_u32 {v(V_VA+dt)}, {LDS_V}, v26")
        A.e(f"v_mov_b32 {v(V_NEG+dt)}, v26")
    A.e(f"s_lshl_b32 s40, {s(S_WAVE)}, 2")
    A.e("v_or_b32 v25, s40, v21")
    A.e("v_xor_b32 v25, v25, v20")
    A.e("v_lshlrev_b32 v25, 4, v25")
    A.e("v_lshl_add_u32 v25, v21, 8, v25")
    A.e(f"s_lshl_b32 s41, {s(S_WAVE)}, 11")
    A.e(f"v_add_u32 {v(V_KD)}, s41, v25")
    A.e(f"s_and_b32 s40, {s(S_WAVE)}, 1"); A.e("s_lshl_b32 s40, s40, 2")
    A.e("v_or_b32 v25, s40, v21")
    A.e("v_lshlrev_b32 v25, 1, v25")
    A.e("v_xor_b32 v25, v25, v20")
    A.e("v_lshlrev_b32 v25, 4, v25")
    A.e("v_lshl_add_u32 v26, v21, 8, v25")
    A.e(f"v_add_u32 {v(V_VD)}, s41, v26")
    A.e("v_lshl_add_u32 v27, v21, 13, v25")
    A.e(f"s_lshl_b32 s42, {s(S_WAVE)}, 16")
    A.e(f"v_add_u32 {v(V_T)}, s42, v27")
    A.e(f"s_add_u32 {s(S_M0K)}, s41, {LDS_K}")
    A.e(f"s_add_u32 {s(S_M0V)}, s41, {LDS_V}")
    A.e("s_waitcnt lgkmcnt(0)")
    A.e("s_lshl_b32 s40, s38, 19")
    srd(A, SRD_K, 4, 524288, offreg=40)
    srd(A, SRD_V, 6, 524288, offreg=40)
    A.e("s_lshl_b32 s40, s38, 8")
    A.e(f"s_add_u32 {s(SRD_W)}, s34, s40"); A.e(f"s_addc_u32 {s(SRD_W+1)}, s35, 0")
    A.e(f"s_sub_u32 {s(SRD_W+2)}, {hex(512*4096*2)}, s40"); A.e(f"s_mov_b32 {s(SRD_W+3)}, 0x20000")
    A.e("s_lshl_b32 s40, s39, 4"); A.e(f"s_lshl_b32 s41, {s(S_WAVE)}, 2"); A.e("s_add_u32 s40, s40, s41")
    A.e("s_lshl_b32 s41, s40, 14")
    srd(A, SRD_X, 36, 65536, off=WS_XN, offreg=41)
    A.e("s_lshl_b32 s41, s40, 17"); A.e("s_lshl_b32 s42, s38, 12"); A.e("s_add_u32 s41, s41, s42")
    srd(A, SRD_O, 36, 4 * 131072, off=WS_O, offreg=41)
    A.e(f"v_lshlrev_b32 {v(V_T+1)}, 4, {v(L)}")
    for i in range(4): A.e(f"v_mov_b32 {v(V_ONE+i)}, 0x3f803f80")

def attn_qproj(A, vm):
    XR = V_S
    NX = 6
    def dmaW(j):
        for jj in range(2):
            A.e(f"s_add_u32 m0, {s(S_M0K)}, {wq_slot(j) + 1024*jj}")
            A.e(f"s_mov_b32 {s(S_T)}, {(32*j + 4*jj) * 8192}")
            A.e(f"buffer_load_dwordx4 {v(V_T)}, {s(SRD_W,4)}, {s(S_T)} offen lds")
            vm.issue(('W', j))
    def loadX(j):
        for qs in range(4):
            off = qs * 16384 + j * 1024
            A.e(f"s_mov_b32 {s(S_T)}, {off}")
            A.e(f"buffer_load_dwordx4 {v(XR + 16*(j % NX) + 4*qs, 4)}, {v(V_T+1)}, {s(SRD_X,4)}, {s(S_T)} offen")
            vm.issue(('X', j))
    def dmaKV(kind, n):
        if kind == 'K':
            A.e(f"s_add_u32 m0, {s(S_M0K)}, {8192*(n & 7)}")
            A.e(f"s_mov_b32 {s(S_T)}, {8192*n}")
            for jj in range(2):
                A.e(f"buffer_load_dwordx4 {v(V_KD)}, {s(SRD_K,4)}, {s(S_T)} offen offset:{1024*jj} lds"); vm.issue(('K', n))
        else:
            A.e(f"s_add_u32 m0, {s(S_M0V)}, {8192*(n & 7)}")
            A.e(f"s_mov_b32 {s(S_T)}, {8192*n}")
            for jj in range(2):
                A.e(f"buffer_load_dwordx4 {v(V_VD)}, {s(SRD_V,4)}, {s(S_T)} offen offset:{1024*jj} lds"); vm.issue(('V', n))
    for p in range(3):
        dmaW(2*p); dmaW(2*p+1); loadX(2*p); loadX(2*p+1)
    for j in range(6, 16): dmaW(j)
    for i in range(128): A.e(f"v_accvgpr_write_b32 {a(A_O+i)}, 0")
    def wread(j, dt, jh):
        base = wq_slot(j)
        addr = V_NEG if base < LDS_V else V_VA
        off = base - (0 if base < LDS_V else LDS_V)
        dst = A_K + 32 * (j & 1)
        return f"ds_read_b64_tr_b16 {a(dst + 4*dt + 2*jh, 2)}, {v(addr + dt)} offset:{off + 1024*jh}"
    vm.wait(('W', 0))
    A.e("s_barrier")
    stamp(A, 2)
    for dt in range(8):
        for jh in range(2): A.e(wread(0, dt, jh))
    for j in range(16):
        if j == 8: stamp(A, 3)
        pre = [[] for _ in range(32)]
        if j % 2 == 0:
            need = [('W', x) for x in (j + 1, j + 2) if x < 16]
            w = vm.waitstr(*need, ('X', j), ('X', j + 1))
            if w: A.e(w)
            A.e("s_barrier")
            if j == 4:
                for n in range(4): dmaKV('K', n)
            if j == 8:
                for n in range(4): dmaKV('V', n)
            if j == 12:
                for n in range(4, 7): dmaKV('K', n)
        nread = 0
        if j + 1 < 16:
            for dt in range(8):
                for jh in range(2):
                    pre[2*(2*dt+jh)].append(wread(j + 1, dt, jh))
        for g in range(32):
            dt, qs = g >> 2, g & 3
            if qs == 0:
                issued_now = sum(len(pre[x]) for x in range(g)) if j + 1 < 16 else 0
                remaining_old = 16 - 2 * (dt + 1)
                cnt = min(15, remaining_old + issued_now)
                A.e(f"s_waitcnt lgkmcnt({cnt})")
            D = a(Oreg(dt, qs), 4)
            A.e(f"{MF} {D}, {a(A_K + 32*(j & 1) + 4*dt, 4)}, {v(XR + 16*(j % NX) + 4*qs, 4)}, {D}")
            for x in pre[g]: A.e(x)
        if j + NX < 16: loadX(j + NX)
    A.e("s_barrier")
    dmaKV('V', 4)
    A.e(f"s_mov_b32 {s(S_T)}, {hex(f2u(QSCALE))}")
    A.e("s_nop 4")
    T = V_S
    for qs in range(4):
        for ds in range(4):
            for h in range(2):
                for r in range(4):
                    A.e(f"v_accvgpr_read_b32 {v(T + 4*h + r)}, {a(Oreg(2*ds + h, qs) + r)}")
            for i in range(8): A.e(f"v_mul_f32 {v(T+i)}, {s(S_T)}, {v(T+i)}")
            q = Qreg(qs, ds)
            for i in range(4): A.e(f"v_cvt_pk_bf16_f32 {v(q+i)}, {v(T+2*i)}, {v(T+2*i+1)}")
            A.e(f"v_permlane32_swap_b32 {v(q)}, {v(q+2)}")
            A.e(f"v_permlane32_swap_b32 {v(q+1)}, {v(q+3)}")
            A.e(f"v_permlane16_swap_b32 {v(q)}, {v(q+2)}")
            A.e(f"v_permlane16_swap_b32 {v(q+1)}, {v(q+3)}")

def rowmax(A, qs, buf, dst, t):
    s0, s1 = Sreg(buf, 0, qs), Sreg(buf, 1, qs)
    A.e(f"v_max3_f32 {v(dst)}, {v(s0)}, {v(s0+1)}, {v(s0+2)}")
    A.e(f"v_max3_f32 {v(dst)}, {v(dst)}, {v(s0+3)}, {v(s1)}")
    A.e(f"v_max3_f32 {v(dst)}, {v(dst)}, {v(s1+1)}, {v(s1+2)}")
    A.e(f"v_max_f32 {v(dst)}, {v(dst)}, {v(s1+3)}")
    A.e(f"v_mov_b32 {v(t)}, {v(dst)}")
    A.e(f"v_permlane16_swap_b32 {v(dst)}, {v(t)}")
    A.e(f"v_max_f32 {v(dst)}, {v(dst)}, {v(t)}")
    A.e(f"v_mov_b32 {v(t)}, {v(dst)}")
    A.e(f"v_permlane32_swap_b32 {v(dst)}, {v(t)}")
    A.e(f"v_max_f32 {v(dst)}, {v(dst)}, {v(t)}")

def qk_plain(A, buf, slot):
    for fr in range(8): A.e(k_read(fr, slot))
    for fr in range(8):
        A.e(f"s_waitcnt lgkmcnt({7 - fr})")
        ks, ds = fr >> 2, fr & 3
        for qs in range(4):
            D = v(Sreg(buf, ks, qs), 4)
            A.e(f"{MF} {D}, {a(A_K + 4*fr, 4)}, {v(Qreg(qs, ds), 4)}, {D if ds else 0}")

def attn_epilogue_store(A):
    T = V_S
    for qs in range(4):
        A.e(f"v_rcp_f32 {v(V_X+qs)}, {v(V_L + 4*qs)}")
    for qs in range(4):
        for u in range(4):
            t = T + 12 * ((qs * 4 + u) & 3)
            for h in range(2):
                for r in range(4):
                    A.e(f"v_accvgpr_read_b32 {v(t + 4*h + r)}, {a(Oreg(2*u + h, qs) + r)}")
            for i in range(8): A.e(f"v_mul_f32 {v(t+i)}, {v(V_X+qs)}, {v(t+i)}")
            for i in range(4): A.e(f"v_cvt_pk_bf16_f32 {v(t+8+i)}, {v(t+2*i)}, {v(t+2*i+1)}")
            A.e(f"s_mov_b32 {s(S_T)}, {qs*131072 + u*1024}")
            A.e(f"buffer_store_dwordx4 {v(t+8,4)}, {v(V_T+1)}, {s(SRD_O,4)}, {s(S_T)} offen")

def gen_attn(A, name, stamp=False):
    kernel_begin(A, name)
    stamp_start(A)
    attn_setup(A, name)
    vm = Tracker(A, "vmcnt", 63)
    if stamp: A.e("s_memtime s[50:51]"); A.e("s_memrealtime s[60:61]")
    globals()['stamp'](A, 1)
    attn_qproj(A, vm)
    globals()['stamp'](A, 4)
    if stamp: A.e("s_memtime s[52:53]")
    vm.wait(('K', 0), ('K', 1))
    A.e("s_barrier")
    qk_plain(A, 0, 0)
    for j in range(4): A.e(k_read(j, 1))
    for i in range(128): A.e(f"v_accvgpr_write_b32 {a(A_O+i)}, 0")
    for i in range(16): A.e(f"v_mov_b32 {v(V_L+i)}, 0")
    for qs in range(4):
        m = V_X + qs
        rowmax(A, qs, 0, m, V_X + 4)
        for r in range(4): A.e(f"v_sub_f32 {v(V_NEG + 4*qs + r)}, 0, {v(m)}")
        for ks in range(2):
            for r in range(4):
                A.e(f"v_sub_f32 {v(Sreg(0, ks, qs) + r)}, {v(Sreg(0, ks, qs) + r)}, {v(m)}")
    A.e(f"s_mov_b32 {s(S_KOFF)}, {8192*7}")
    A.e(f"s_mov_b32 {s(S_VOFF)}, {8192*5}")
    A.e("s_waitcnt lgkmcnt(3)")
    n_after = vm.count_after(('V', 3))
    if n_after is None: n_after = len(vm.ops)
    attn_stage(A, 0, do_pv=False, first_cvt=False, vm=n_after + 4)
    A.e(f"s_mov_b32 {s(S_CNT)}, 0")
    A.raw(".p2align 6")
    A.label(f"{name}_loop")
    for n in range(1, 9):
        attn_stage(A, n)
    A.e(f"s_add_u32 {s(S_CNT)}, {s(S_CNT)}, 1")
    A.e(f"s_cmp_lt_u32 {s(S_CNT)}, 7")
    A.e(f"s_cbranch_scc1 {name}_loop")
    for n in range(57, 64):
        last = (n == 63)
        attn_stage(A, n, do_qk=not last, kread_hi=not last, kread_lo=(n < 62), dma=(n <= 58),
                   barrier=(n % 2 == 0), vm={58: 16, 60: 8, 62: 0}.get(n, 0), tail_cvt=last)
    attn_stage(A, 64, do_qk=False, do_sm=False, kread_hi=False, kread_lo=False, dma=False, barrier=False, first_cvt=False)
    globals()['stamp'](A, 5)
    if stamp: A.e("s_memtime s[54:55]")
    A.e("s_nop 7")
    A.e(f"s_mov_b32 {s(S_T)}, 0x4e800000")
    A.e(f"v_cmp_nge_f32 vcc, {s(S_T)}, {v(V_L)}")
    A.e("s_mov_b64 s[40:41], vcc")
    for qs in range(1, 4):
        A.e(f"v_cmp_nge_f32 vcc, {s(S_T)}, {v(V_L + 4*qs)}")
        A.e("s_or_b64 s[40:41], s[40:41], vcc")
    A.e("s_cmp_lg_u64 s[40:41], 0")
    A.e("s_cselect_b32 s40, 1, 0")
    A.e(f"v_mov_b32 {v(V_X)}, s40")
    A.e(f"s_lshl_b32 s41, {s(S_WAVE)}, 2")
    A.e(f"s_add_u32 s41, s41, {LDS_FLAG}")
    A.e(f"v_mov_b32 {v(V_X+1)}, s41")
    A.e(f"ds_write_b32 {v(V_X+1)}, {v(V_X)}")
    A.e("s_waitcnt lgkmcnt(0) vmcnt(0)")
    A.e("s_barrier")
    A.e(f"v_mov_b32 {v(V_X+1)}, {LDS_FLAG}")
    A.e(f"ds_read_b128 {v(V_X+4,4)}, {v(V_X+1)}")
    A.e("s_waitcnt lgkmcnt(0)")
    A.e(f"v_or3_b32 {v(V_X)}, {v(V_X+4)}, {v(V_X+5)}, {v(V_X+6)}")
    A.e(f"v_or_b32 {v(V_X)}, {v(V_X)}, {v(V_X+7)}")
    A.e(f"v_readfirstlane_b32 s40, {v(V_X)}")
    A.e("s_cmp_lg_u32 s40, 0")
    A.e(f"s_cbranch_scc1 {name}_slow")
    A.label(f"{name}_store")
    attn_epilogue_store(A)
    if stamp:
        A.e("s_memtime s[56:57]"); A.e("s_memrealtime s[62:63]")
        A.e("s_waitcnt lgkmcnt(0) vmcnt(0)")
        load_ptr(A, 44, "dbg")
        A.e("s_sub_u32 s52, s52, s50"); A.e("s_sub_u32 s54, s54, s50"); A.e("s_sub_u32 s56, s56, s50"); A.e("s_sub_u32 s62, s62, s60")
        A.e("s_waitcnt lgkmcnt(0)")
        srd(A, 64, 44, 256)
        A.e("v_mov_b32 v40, s52"); A.e("v_mov_b32 v41, s54"); A.e("v_mov_b32 v42, s56"); A.e("v_mov_b32 v43, s62")
        A.e("s_and_b32 s46, s2, 3"); A.e("s_lshl_b32 s46, s46, 2"); A.e(f"s_add_u32 s46, s46, {s(S_WAVE)}"); A.e("s_lshl_b32 s46, s46, 4")
        A.e("v_mov_b32 v44, s46")
        A.e("s_cmp_ge_u32 s2, 4")
        A.e(f"s_cbranch_scc1 {name}_end")
        A.e("buffer_store_dwordx4 v[40:43], v44, s[64:67], 0 offen")
    globals()['stamp'](A, 6)
    stamp_dump(A, name, 7)
    A.e("s_waitcnt vmcnt(0)")
    A.label(f"{name}_end")
    A.e("s_endpgm")
    A.label(f"{name}_slow")
    for i in range(128): A.e(f"v_accvgpr_write_b32 {a(A_O+i)}, 0")
    for i in range(16): A.e(f"v_mov_b32 {v(V_L+i)}, 0")
    for qs in range(4): A.e(f"v_mov_b32 {v(V_NEG+qs)}, 0xff7fffff")
    A.e(f"s_mov_b32 {s(S_KOFF)}, 0")
    A.label(f"{name}_slowloop")
    A.e("s_barrier")
    A.e(f"s_mov_b32 m0, {s(S_M0K)}")
    A.e("s_nop 0")
    for jj in range(2): A.e(f"buffer_load_dwordx4 {v(V_KD)}, {s(SRD_K,4)}, {s(S_KOFF)} offen offset:{1024*jj} lds")
    A.e(f"s_mov_b32 m0, {s(S_M0V)}")
    A.e("s_nop 0")
    for jj in range(2): A.e(f"buffer_load_dwordx4 {v(V_VD)}, {s(SRD_V,4)}, {s(S_KOFF)} offen offset:{1024*jj} lds")
    A.e("s_waitcnt vmcnt(0)")
    A.e("s_barrier")
    qk_plain(A, 0, 0)
    for dt in range(8):
        for jh in range(2): A.e(v_read(dt, jh, 0))
    A.e("s_nop 7")
    for qs in range(4):
        mn, al = V_X, V_X + 1
        rowmax(A, qs, 0, mn, V_X + 4)
        A.e(f"v_max_f32 {v(mn)}, {v(mn)}, {v(V_NEG+qs)}")
        A.e(f"v_sub_f32 {v(al)}, {v(V_NEG+qs)}, {v(mn)}")
        A.e(f"v_exp_f32 {v(al)}, {v(al)}")
        A.e(f"v_mov_b32 {v(V_NEG+qs)}, {v(mn)}")
        for ks in range(2):
            for r in range(4):
                x = Sreg(0, ks, qs) + r
                A.e(f"v_sub_f32 {v(x)}, {v(x)}, {v(mn)}")
                A.e(f"v_exp_f32 {v(x)}, {v(x)}")
        for ks in range(2):
            for h in range(2):
                A.e(f"v_cvt_pk_bf16_f32 {v(Preg(0, qs) + 2*ks + h)}, {v(Sreg(0, ks, qs) + 2*h)}, {v(Sreg(0, ks, qs) + 2*h + 1)}")
        for r in range(4): A.e(f"v_mul_f32 {v(V_L + 4*qs + r)}, {v(al)}, {v(V_L + 4*qs + r)}")
        for dt in range(8):
            for r in range(4):
                A.e(f"v_accvgpr_read_b32 {v(V_X+8+r)}, {a(Oreg(dt, qs) + r)}")
            for r in range(4):
                A.e(f"v_mul_f32 {v(V_X+8+r)}, {v(al)}, {v(V_X+8+r)}")
            for r in range(4):
                A.e(f"v_accvgpr_write_b32 {a(Oreg(dt, qs) + r)}, {v(V_X+8+r)}")
    A.e("s_waitcnt lgkmcnt(0)")
    A.e("s_nop 3")
    for dt in range(8):
        for qs in range(4):
            D = a(Oreg(dt, qs), 4)
            A.e(f"{MF} {D}, {a(A_V + 4*dt, 4)}, {v(Preg(0, qs), 4)}, {D}")
    for qs in range(4):
        D = v(V_L + 4 * qs, 4)
        A.e(f"{MF} {D}, {v(V_ONE, 4)}, {v(Preg(0, qs), 4)}, {D}")
    A.e(f"s_add_u32 {s(S_KOFF)}, {s(S_KOFF)}, 8192")
    A.e(f"s_cmp_lt_u32 {s(S_KOFF)}, 524288")
    A.e(f"s_cbranch_scc1 {name}_slowloop")
    A.e("s_nop 7")
    A.e(f"s_branch {name}_store")


C_GELU1 = -2.0 * 1.4426950408889634 * 0.7978845608028654
C_GELU2 = C_GELU1 * 0.044715
def gelu_inplace(A, regs, tmp, vc2):
    for x, t in zip(regs, tmp): A.e(f"v_mul_f32 {v(t)}, {v(x)}, {v(x)}")
    for x, t in zip(regs, tmp): A.e(f"v_fmaak_f32 {v(t)}, {v(t)}, {v(vc2)}, {hex(f2u(C_GELU1))}")
    for x, t in zip(regs, tmp): A.e(f"v_mul_f32 {v(t)}, {v(t)}, {v(x)}")
    for x, t in zip(regs, tmp): A.e(f"v_exp_f32 {v(t)}, {v(t)}")
    for x, t in zip(regs, tmp): A.e(f"v_add_f32 {v(t)}, 1.0, {v(t)}")
    for x, t in zip(regs, tmp): A.e(f"v_rcp_f32 {v(t)}, {v(t)}")
    for x, t in zip(regs, tmp): A.e(f"v_mul_f32 {v(x)}, {v(x)}, {v(t)}")
def round_pairs(A, regs, tmp):
    for i in range(0, len(regs), 2):
        A.e(f"v_cvt_pk_bf16_f32 {v(tmp[i//2])}, {v(regs[i])}, {v(regs[i+1])}")
    for i in range(0, len(regs), 2):
        A.e(f"v_lshlrev_b32 {v(regs[i])}, 16, {v(tmp[i//2])}")
        A.e(f"v_and_b32 {v(regs[i+1])}, 0xffff0000, {v(tmp[i//2])}")

EA_LANE = 1
EA_RA   = 4
EA_WD   = 8
EA_BV   = 9
EA_T    = 13
EA_ACC  = 32
EA_WF   = 160
EA_B    = 192
EA_RING = 8
S_W = 3

def ea_setup(A, name, ptrs):
    A.e("s_cmp_ge_u32 s2, 256")
    A.e(f"s_cbranch_scc1 {name}_end")
    for (r, p) in ptrs: load_ptr(A, r, p)
    A.e(f"v_and_b32 {v(EA_LANE)}, 63, v0")
    A.e("v_lshrrev_b32 v2, 6, v0")
    A.e("s_nop 0")
    A.e(f"v_readfirstlane_b32 {s(S_W)}, v2")
    A.e("s_and_b32 s38, s2, 7"); A.e("s_lshl_b32 s38, s38, 2")
    A.e("s_lshr_b32 s39, s2, 3"); A.e("s_and_b32 s39, s39, 3"); A.e("s_add_u32 s38, s38, s39")
    A.e("s_lshr_b32 s39, s2, 5")
    L = EA_LANE
    A.e(f"v_and_b32 v20, 15, {v(L)}")
    A.e(f"v_lshrrev_b32 v21, 4, {v(L)}")
    A.e("v_lshrrev_b32 v22, 2, v20")
    A.e("v_and_b32 v23, 3, v20")
    A.e("v_lshl_add_u32 v24, v21, 2, v22")
    A.e("v_lshrrev_b32 v25, 1, v24")
    A.e("v_and_b32 v25, 3, v25")
    A.e("v_lshlrev_b32 v24, 7, v24")
    A.e("v_lshl_add_u32 v24, v23, 3, v24")
    A.e(f"s_lshl_b32 s40, {s(S_W)}, 15")
    A.e("v_add_u32 v24, s40, v24")
    for nt in range(4):
        A.e(f"v_xor_b32 v26, {nt}, v25")
        A.e(f"v_lshl_add_u32 {v(EA_RA+nt)}, v26, 5, v24")
    A.e(f"v_lshrrev_b32 v24, 3, {v(L)}")
    A.e(f"v_and_b32 v25, 7, {v(L)}")
    A.e("v_lshlrev_b32 v26, 1, v21")
    A.e("v_xor_b32 v25, v25, v26")
    A.e("v_lshlrev_b32 v25, 4, v25")
    A.e(f"v_lshl_add_u32 {v(EA_WD)}, v24, 10, v25")
    A.e(f"v_lshlrev_b32 {v(EA_T)}, 4, {v(L)}")

def ea_stream(A, steps, depth, stamps={}):
    vm = Tracker(A, "vmcnt", 63)
    n = len(steps)
    def breg(j, ms):
        k = (j % depth) * 16 + 4 * ms
        return v(EA_B + k, 4) if k < 64 else a(k - 64, 4)
    def issue(j):
        st = steps[j]
        for jj in range(4):
            A.e(f"s_add_u32 m0, s40, {4096*(j % EA_RING) + 1024*jj}")
            A.e(f"s_add_u32 s33, {s(st['wbase'])}, {st['woff'] + 8192*jj}")
            A.e(f"buffer_load_dwordx4 {v(EA_WD)}, {s(st['wsrd'],4)}, s33 offen lds")
            vm.issue(('W', j))
        for ms in range(4):
            A.e(f"s_mov_b32 s33, {st['boff'] + st['bms']*ms}")
            A.e(f"buffer_load_dwordx4 {breg(j, ms)}, {v(st['bv'][ms])}, {s(st['bsrd'],4)}, s33 offen")
            vm.issue(('B', j))
    def reads(j):
        out = []
        for nt in range(4):
            for jh in range(2):
                out.append(f"ds_read_b64_tr_b16 {v(EA_WF + 16*(j & 1) + 4*nt + 2*jh, 2)}, {v(EA_RA+nt)} offset:{4096*(j % EA_RING) + 2048*jh}")
        return out
    for j in range(min(depth, n)): issue(j)
    first = set()
    for st in steps:
        if st['acc'] not in first:
            first.add(st['acc'])
            for i in range(64): A.e(f"v_mov_b32 {v(st['acc']+i)}, 0")
    vm.wait(('W', 0))
    for r in reads(0): A.e(r)
    for j in range(n):
        st = steps[j]
        if j in stamps: stamp(A, stamps[j])
        tags = [('B', j)] + ([('W', j + 1)] if j + 1 < n else [])
        vm.wait(*tags)
        rd = reads(j + 1) if j + 1 < n else []
        A.e(f"s_waitcnt lgkmcnt(0)")
        g = 0
        for nt in range(4):
            for ms in range(4):
                D = v(st['acc'] + 16*ms + 4*nt, 4)
                A.e(f"{MF} {D}, {v(EA_WF + 16*(j & 1) + 4*nt, 4)}, {breg(j, ms)}, {D}")
                if g % 2 == 0 and rd: A.e(rd.pop(0))
                g += 1
        if j + depth < n: issue(j + depth)

def ea_reduce(A, accs):
    A.e("s_nop 7")
    A.e("s_barrier")
    A.e(f"s_lshl_b32 s41, {s(S_W)}, 14")
    A.e(f"v_add_u32 v24, s41, {v(EA_T)}")
    for k, acc in enumerate(accs):
        for ms in range(4):
            for nt in range(4):
                A.e(f"ds_write_b128 v24, {v(acc + 16*ms + 4*nt, 4)} offset:{4096*ms + 1024*nt}")
        if k + 1 < len(accs): A.e("v_add_u32 v24, 0x10000, v24")
    A.e("s_waitcnt lgkmcnt(0)")
    A.e("s_barrier")
    A.e(f"s_lshl_b32 s41, {s(S_W)}, 12")
    A.e(f"v_add_u32 v24, s41, {v(EA_T)}")
    for k, acc in enumerate(accs):
        for src_w in range(4):
            for nt in range(4):
                A.e(f"ds_read_b128 {v(acc + 16*src_w + 4*nt, 4)}, v24 offset:{16384*src_w + 1024*nt}")
        if k + 1 < len(accs): A.e("v_add_u32 v24, 0x10000, v24")
    A.e("s_waitcnt lgkmcnt(0)")
    for acc in accs:
        for i in range(16):
            A.e(f"v_add_f32 {v(acc+i)}, {v(acc+i)}, {v(acc+16+i)}")
            A.e(f"v_add_f32 {v(acc+32+i)}, {v(acc+32+i)}, {v(acc+48+i)}")
        for i in range(16):
            A.e(f"v_add_f32 {v(acc+i)}, {v(acc+i)}, {v(acc+32+i)}")

def gen_g1(A, name):
    kernel_begin(A, name)
    stamp_start(A)
    ea_setup(A, name, [(4, "w1"), (6, "ws")])
    A.e("s_waitcnt lgkmcnt(0)")
    srd(A, 8, 4, 512 * 1024)
    A.e("s_lshl_b32 s41, s38, 16")
    srd(A, 12, 6, 65536, off=WS_LN1, offreg=41)
    srd(A, 16, 6, 65536, off=WS_H, offreg=41)
    A.e(f"s_lshl_b32 s42, {s(S_W)}, 17"); A.e("s_lshl_b32 s43, s39, 7"); A.e("s_add_u32 s42, s42, s43")
    A.e(f"s_lshl_b32 s43, {s(S_W)}, 12")
    A.e(f"v_add_u32 {v(EA_BV)}, s43, {v(EA_T)}")
    steps = [dict(acc=EA_ACC, wsrd=8, wbase=42, woff=32*1024*j, bsrd=12, bv=[EA_BV]*4, boff=1024*j, bms=16384) for j in range(4)]
    ea_stream(A, steps, 4)
    ea_reduce(A, [EA_ACC])
    R = [EA_ACC + i for i in range(16)]; T = [EA_ACC + 16 + i for i in range(16)]
    A.e(f"v_mov_b32 v25, {hex(f2u(C_GELU2))}")
    round_pairs(A, R, T)
    gelu_inplace(A, R, T, 25)
    for i in range(8): A.e(f"v_cvt_pk_bf16_f32 {v(EA_ACC+32+i)}, {v(R[2*i])}, {v(R[2*i+1])}")
    A.e(f"s_lshl_b32 s41, {s(S_W)}, 14"); A.e("s_lshl_b32 s43, s39, 11"); A.e("s_add_u32 s41, s41, s43")
    A.e("s_add_u32 s43, s41, 1024")
    A.e(f"buffer_store_dwordx4 {v(EA_ACC+32,4)}, {v(EA_T)}, s[16:19], s41 offen")
    A.e(f"buffer_store_dwordx4 {v(EA_ACC+36,4)}, {v(EA_T)}, s[16:19], s43 offen")
    stamp_dump(A, name, 1)
    A.label(f"{name}_end")
    A.e("s_endpgm")

def gen_g2(A, name):
    kernel_begin(A, name)
    stamp_start(A)
    ea_setup(A, name, [(4, "w2"), (6, "ws")])
    A.e("s_waitcnt lgkmcnt(0)")
    srd(A, 8, 4, 512 * 1024)
    srd(A, 12, 6, 2 * MB, off=WS_H)
    A.e("s_lshl_b32 s41, s38, 16")
    srd(A, 16, 6, 65536, off=WS_X1, offreg=41)
    srd(A, 20, 6, 65536, off=WS_XN, offreg=41)
    srd(A, 24, 6, 2048 * 64, off=WS_ST)
    A.e(f"s_lshl_b32 s42, {s(S_W)}, 17"); A.e("s_lshl_b32 s43, s39, 7"); A.e("s_add_u32 s42, s42, s43")
    A.e(f"s_lshr_b32 s43, {s(S_W)}, 1"); A.e("s_add_u32 s43, s43, 1")
    A.e(f"s_and_b32 s44, {s(S_W)}, 1")
    A.e("s_sub_u32 s45, 0, s43")
    A.e("s_cmp_eq_u32 s44, 0")
    A.e("s_cselect_b32 s43, s45, s43")
    A.e("s_lshl_b32 s44, s38, 6"); A.e("s_add_u32 s43, s43, s44")
    A.e(f"s_lshl_b32 s44, {s(S_W)}, 12")
    for ms in range(4):
        A.e(f"v_add_u32 v24, s43, v20")
        if ms: A.e(f"v_add_u32 v24, {16*ms}, v24")
        A.e("v_lshrrev_b32 v25, 4, v24")
        A.e("v_lshlrev_b32 v25, 14, v25")
        A.e("v_and_b32 v26, 15, v24")
        A.e("v_lshl_add_u32 v25, v26, 4, v25")
        A.e("v_lshl_add_u32 v25, v21, 8, v25")
        A.e("v_add_u32 v25, s44, v25")
        A.e("v_cmp_gt_u32 vcc, 0x800, v24")
        A.e(f"v_mov_b32 v26, 0x80000000")
        A.e(f"v_cndmask_b32 {v(EA_BV+ms)}, v26, v25, vcc")
    steps = [dict(acc=EA_ACC, wsrd=8, wbase=42, woff=32*1024*j, bsrd=12, bv=[EA_BV+ms for ms in range(4)], boff=1024*j, bms=0) for j in range(4)]
    A.e("v_lshrrev_b32 v24, 1, v21")
    A.e("v_lshlrev_b32 v24, 8, v24")
    A.e("v_lshl_add_u32 v24, v20, 4, v24")
    A.e("v_and_b32 v25, 1, v21")
    A.e("v_lshl_add_u32 v24, v25, 3, v24")
    A.e(f"s_lshl_b32 s44, {s(S_W)}, 14"); A.e("s_lshl_b32 s45, s39, 11"); A.e("s_add_u32 s44, s44, s45")
    A.e("v_add_u32 v24, s44, v24")
    XR = 100
    for nt in range(4):
        A.e(f"buffer_load_dwordx2 {v(XR + 2*nt, 2)}, v24, s[20:23], 0 offen offset:{1024*(nt>>1) + 512*(nt&1)}")
    ea_stream(A, steps, 4)
    ea_reduce(A, [EA_ACC])
    R = [EA_ACC + i for i in range(16)]; T = [EA_ACC + 16 + i for i in range(16)]
    round_pairs(A, R, T)
    A.e("s_waitcnt vmcnt(0)")
    unpack8(A, EA_ACC + 16, XR, 8)
    for i in range(16): A.e(f"v_add_f32 {v(R[i])}, {v(R[i])}, {v(T[i])}")
    P = EA_ACC + 32
    for i in range(8): A.e(f"v_cvt_pk_bf16_f32 {v(P+i)}, {v(R[2*i])}, {v(R[2*i+1])}")
    A.e(f"s_lshl_b32 s41, {s(S_W)}, 14"); A.e("s_lshl_b32 s43, s39, 11"); A.e("s_add_u32 s41, s41, s43")
    A.e("s_add_u32 s43, s41, 1024")
    A.e(f"buffer_store_dwordx4 {v(P,4)}, {v(EA_T)}, s[16:19], s41 offen")
    A.e(f"buffer_store_dwordx4 {v(P+4,4)}, {v(EA_T)}, s[16:19], s43 offen")
    unpack8(A, EA_ACC, P, 8)
    A.e(f"v_add_f32 v26, {v(R[0])}, {v(R[1])}")
    A.e(f"v_mul_f32 v27, {v(R[0])}, {v(R[0])}")
    A.e(f"v_fmac_f32 v27, {v(R[1])}, {v(R[1])}")
    for i in range(2, 16):
        A.e(f"v_add_f32 v26, v26, {v(R[i])}")
        A.e(f"v_fmac_f32 v27, {v(R[i])}, {v(R[i])}")
    for (sw) in ("16", "32"):
        A.e("v_mov_b32 v28, v26"); A.e("v_mov_b32 v29, v27")
        A.e(f"v_permlane{sw}_swap_b32 v26, v28"); A.e(f"v_permlane{sw}_swap_b32 v27, v29")
        A.e("v_add_f32 v26, v26, v28"); A.e("v_add_f32 v27, v27, v29")
    A.e("s_lshl_b32 s41, s38, 6"); A.e(f"s_lshl_b32 s43, {s(S_W)}, 4"); A.e("s_add_u32 s41, s41, s43")
    A.e("v_add_u32 v24, s41, v20")
    A.e("v_lshlrev_b32 v24, 6, v24")
    A.e("s_lshl_b32 s43, s39, 3")
    A.e("v_add_u32 v24, s43, v24")
    A.e(f"v_cmp_gt_u32 vcc, 16, {v(EA_LANE)}")
    A.e("s_and_saveexec_b64 s[46:47], vcc")
    A.e("buffer_store_dwordx2 v[26:27], v24, s[24:27], 0 offen")
    A.e("s_mov_b64 exec, -1")
    stamp_dump(A, name, 1)
    A.label(f"{name}_end")
    A.e("s_endpgm")

def gen_g3(A, name):
    kernel_begin(A, name)
    stamp_start(A)
    A.e("s_lshr_b32 s39, s2, 4")
    A.e("s_cmp_ge_u32 s39, 14")
    A.e(f"s_cbranch_scc1 {name}_end")
    load_ptr(A, 4, "w3"); load_ptr(A, 6, "ws")
    A.e("v_and_b32 v1, 63, v0")
    A.e("v_lshrrev_b32 v2, 6, v0")
    A.e("s_nop 0")
    A.e(f"v_readfirstlane_b32 {s(S_W)}, v2")
    A.e("s_and_b32 s38, s2, 7"); A.e("s_lshl_b32 s38, s38, 1")
    A.e("s_lshr_b32 s40, s2, 3"); A.e("s_and_b32 s40, s40, 1"); A.e("s_add_u32 s38, s38, s40")
    A.e("v_and_b32 v20, 15, v1")
    A.e("v_lshrrev_b32 v21, 4, v1")
    A.e("v_lshrrev_b32 v22, 2, v20")
    A.e("v_and_b32 v23, 3, v20")
    A.e("v_lshl_add_u32 v24, v21, 2, v22")
    A.e("v_and_b32 v25, 7, v24")
    A.e("v_lshlrev_b32 v24, 8, v24")
    A.e("v_lshl_add_u32 v24, v23, 3, v24")
    RA = 4
    for nt in range(8):
        A.e(f"v_xor_b32 v26, {nt}, v25")
        A.e(f"v_lshl_add_u32 {v(RA+nt)}, v26, 5, v24")
    RA2 = 12
    for nt in range(8): A.e(f"v_add_u32 {v(RA2+nt)}, 0x10000, {v(RA+nt)}")
    A.e("s_movk_i32 s40, 3584")
    A.e(f"s_lshl_b32 s41, {s(S_W)}, 3")
    for jj in range(2):
        A.e(f"v_add_u32 v24, {4*jj}, v21")
        A.e("v_lshlrev_b32 v25, 1, v24")
        A.e("v_xor_b32 v25, v25, v20")
        A.e("v_lshlrev_b32 v25, 4, v25")
        A.e("v_add_u32 v24, s41, v24")
        A.e("v_mul_lo_u32 v24, v24, s40")
        A.e(f"v_add_u32 {v(28+jj)}, v24, v25")
    A.e("v_lshlrev_b32 v30, 4, v1")
    A.e("s_waitcnt lgkmcnt(0)")
    A.e("s_lshl_b32 s40, s39, 8")
    A.e("s_add_u32 s8, s4, s40"); A.e("s_addc_u32 s9, s5, 0"); A.e(f"s_sub_u32 s10, {hex(512*3584)}, s40"); A.e("s_mov_b32 s11, 0x20000")
    A.e("s_lshl_b32 s40, s38, 3"); A.e(f"s_lshl_b32 s41, {s(S_W)}, 1"); A.e("s_add_u32 s40, s40, s41")
    A.e("s_lshl_b32 s41, s40, 14")
    srd(A, 12, 6, 32768, off=WS_X1, offreg=41)
    A.e(f"s_mul_i32 s41, s40, {56*1024}")
    srd(A, 16, 6, 2 * 56 * 1024, off=WS_H3, offreg=41)
    srd(A, 20, 6, 2048 * 64, off=WS_ST)
    srd(A, 24, 6, 1792 * 4, off=WS_CS3)
    vm = Tracker(A, "vmcnt", 63)
    A.e(f"s_lshl_b32 s42, {s(S_W)}, 11")
    XB = 128
    def dmaW(j):
        for jj in range(2):
            A.e(f"s_add_u32 m0, s42, {8192*j + 1024*jj}")
            A.e(f"s_mov_b32 s33, {32*j*3584}")
            A.e(f"buffer_load_dwordx4 {v(28+jj)}, s[8:11], s33 offen lds"); vm.issue(('W', j))
    def loadX(j):
        for ms in range(2):
            A.e(f"s_mov_b32 s33, {ms*16384 + j*1024}")
            A.e(f"buffer_load_dwordx4 {v(XB + 8*j + 4*ms, 4)}, v30, s[12:15], s33 offen"); vm.issue(('X', j))
    for j in range(14):
        dmaW(j); loadX(j)
    ACC = 32
    WF = 96
    for i in range(64): A.e(f"v_mov_b32 {v(ACC+i)}, 0")
    def wread(j, nt, jh):
        base = 8192 * j
        addr, off = (RA, base) if base < 65536 else (RA2, base - 65536)
        return f"ds_read_b64_tr_b16 {a(32*(j & 1) + 4*nt + 2*jh, 2)}, {v(addr+nt)} offset:{off + 4096*jh}"
    stamp(A, 1)
    vm.wait(('W', 0))
    A.e("s_barrier")
    stamp(A, 2)
    for nt in range(8):
        for jh in range(2): A.e(wread(0, nt, jh))
    for j in range(16):
        if j == 8: stamp(A, 3)
        if j % 2 == 0:
            need = [('W', x) for x in (j + 1, j + 2) if x < 16]
            vm.wait(*need, ('X', j), ('X', j + 1))
            A.e("s_barrier")
        if j + 14 < 16: dmaW(j + 14); loadX(j + 14)
        rd = [wread(j + 1, nt, jh) for nt in range(8) for jh in range(2)] if j + 1 < 16 else []
        issued = 0
        for nt in range(8):
            cnt = min(15, 16 - 2*(nt + 1) + issued)
            A.e(f"s_waitcnt lgkmcnt({cnt})")
            for ms in range(2):
                D = v(ACC + 32*ms + 4*nt, 4)
                A.e(f"{MF} {D}, {a(32*(j & 1) + 4*nt, 4)}, {v(XB + 8*j + 4*ms, 4)}, {D}")
                if rd: A.e(rd.pop(0)); issued += 1
    stamp(A, 4)
    A.e("s_lshl_b32 s40, s38, 7"); A.e(f"s_lshl_b32 s41, {s(S_W)}, 5"); A.e("s_add_u32 s40, s40, s41")
    A.e("v_add_u32 v24, s40, v20")
    A.e("v_lshlrev_b32 v24, 6, v24")
    ST = 128
    for ms in range(2):
        for q in range(4):
            A.e(f"buffer_load_dwordx4 {v(ST + 16*ms + 4*q, 4)}, v24, s[20:23], 0 offen offset:{1024*ms + 16*q}")
    CS = 160
    A.e("s_lshl_b32 s40, s39, 9")
    A.e("v_lshlrev_b32 v25, 4, v21")
    A.e("v_add_u32 v25, s40, v25")
    for nt in range(8):
        A.e(f"buffer_load_dwordx4 {v(CS + 4*nt, 4)}, v25, s[24:27], 0 offen offset:{64*nt}")
    A.e("s_waitcnt vmcnt(0)")
    stamp(A, 5)
    A.e(f"v_mov_b32 v27, {hex(f2u(C_GELU2))}")
    for ms in range(2):
        b = ST + 16 * ms
        sm, sq, mb, rs = 200, 201, 202, 203
        A.e(f"v_add_f32 {v(sm)}, {v(b)}, {v(b+2)}"); A.e(f"v_add_f32 {v(sq)}, {v(b+1)}, {v(b+3)}")
        for q in range(2, 8):
            A.e(f"v_add_f32 {v(sm)}, {v(sm)}, {v(b+2*q)}"); A.e(f"v_add_f32 {v(sq)}, {v(sq)}, {v(b+2*q+1)}")
        A.e(f"v_mul_f32 {v(sm)}, 0x3b000000, {v(sm)}")
        A.e(f"v_mul_f32 {v(sq)}, 0x3b000000, {v(sq)}")
        A.e(f"v_fma_f32 {v(sq)}, -{v(sm)}, {v(sm)}, {v(sq)}")
        A.e(f"v_max_f32 {v(sq)}, 0, {v(sq)}")
        round_bf16(A, mb, sm)
        round_bf16(A, sq, sq)
        A.e(f"v_add_f32 {v(sq)}, 0x3727c5ac, {v(sq)}")
        round_bf16(A, sq, sq)
        A.e(f"v_sqrt_f32 {v(sq)}, {v(sq)}")
        round_bf16(A, sq, sq)
        A.e(f"v_rcp_f32 {v(rs)}, {v(sq)}")
        for half in range(2):
            R = [ACC + 32*ms + 16*half + i for i in range(16)]
            T = [208 + i for i in range(16)]
            for i in range(16):
                A.e(f"v_fma_f32 {v(R[i])}, -{v(mb)}, {v(CS + 16*half + i)}, {v(R[i])}")
            for i in range(16): A.e(f"v_mul_f32 {v(R[i])}, {v(rs)}, {v(R[i])}")
            round_pairs(A, R, T)
            gelu_inplace(A, R, T, 27)
            P = 224 + 8 * half
            for i in range(8): A.e(f"v_cvt_pk_bf16_f32 {v(P+i)}, {v(R[2*i])}, {v(R[2*i+1])}")
            for u in range(2):
                A.e(f"s_lshl_b32 s40, s39, 12")
                A.e(f"s_add_u32 s40, s40, {ms*56*1024 + (2*half + u)*1024}")
                A.e(f"buffer_store_dwordx4 {v(P + 4*u, 4)}, v30, s[16:19], s40 offen")
    stamp(A, 6)
    stamp_dump(A, name, 7)
    A.label(f"{name}_end")
    A.e("s_endpgm")

def gen_final(A, name):
    kernel_begin(A, name)
    stamp_start(A)
    ea_setup(A, name, [(4, "wo"), (6, "ws"), (34, "w4"), (36, "x"), (44, "out")])
    A.e("s_waitcnt lgkmcnt(0)")
    srd(A, 8, 4, 4096 * 1024)
    srd(A, 12, 34, 1792 * 1024)
    A.e("s_lshl_b32 s41, s38, 19")
    srd(A, 16, 6, 4 * 131072, off=WS_O, offreg=41)
    A.e(f"s_mul_i32 s41, s38, {4*56*1024}")
    srd(A, 20, 6, 4 * 56 * 1024, off=WS_H3, offreg=41)
    A.e("s_lshl_b32 s41, s38, 16")
    srd(A, 24, 6, 65536, off=WS_X1, offreg=41)
    srd(A, 28, 36, 2 * MB)
    srd(A, 48, 44, 2 * MB)
    A.e("s_lshl_b32 s43, s39, 7")
    A.e(f"s_lshl_b32 s42, {s(S_W)}, 20"); A.e("s_add_u32 s42, s42, s43")
    A.e(f"s_mul_i32 s45, {s(S_W)}, {448*1024}"); A.e("s_add_u32 s45, s45, s43")
    A.e(f"s_lshl_b32 s43, {s(S_W)}, 15")
    A.e(f"v_add_u32 {v(EA_BV)}, s43, {v(EA_T)}")
    A.e(f"s_mul_i32 s43, {s(S_W)}, {14*1024}")
    A.e(f"v_add_u32 {v(EA_BV+1)}, s43, {v(EA_T)}")
    A1, A2 = EA_ACC, EA_ACC + 64
    steps = [dict(acc=A1, wsrd=8, wbase=42, woff=32*1024*j, bsrd=16, bv=[EA_BV]*4, boff=1024*j, bms=131072) for j in range(32)]
    steps += [dict(acc=A2, wsrd=12, wbase=45, woff=32*1024*j, bsrd=20, bv=[EA_BV+1]*4, boff=1024*j, bms=56*1024) for j in range(14)]
    A.e(f"s_lshl_b32 s46, {s(S_W)}, 14"); A.e("s_lshl_b32 s47, s39, 11"); A.e("s_add_u32 s46, s46, s47")
    A.e("s_add_u32 s47, s46, 1024")
    A.e(f"buffer_load_dwordx4 {a(64,4)}, {v(EA_T)}, s[24:27], s46 offen")
    A.e(f"buffer_load_dwordx4 {a(68,4)}, {v(EA_T)}, s[24:27], s47 offen")
    A.e("s_lshl_b32 s46, s38, 6"); A.e(f"s_lshl_b32 s47, {s(S_W)}, 4"); A.e("s_add_u32 s46, s46, s47")
    A.e("v_add_u32 v14, s46, v20")
    A.e("v_lshlrev_b32 v14, 10, v14")
    A.e("v_lshl_add_u32 v14, v21, 3, v14")
    A.e("s_lshl_b32 s47, s39, 7")
    A.e("v_add_u32 v14, s47, v14")
    for nt in range(4):
        A.e(f"buffer_load_dwordx2 {a(72 + 2*nt, 2)}, v14, s[28:31], 0 offen offset:{32*nt}")
    stamp(A, 1)
    ea_stream(A, steps, 7, stamps={1: 2, 8: 3, 32: 4})
    stamp(A, 5)
    ea_reduce(A, [A1, A2])
    stamp(A, 6)
    Sr = [A1 + i for i in range(16)]; Hr = [A2 + i for i in range(16)]
    T = [A1 + 16 + i for i in range(16)]; U = [A2 + 16 + i for i in range(16)]
    round_pairs(A, Sr, T)
    round_pairs(A, Hr, T)
    for i in range(8): A.e(f"v_accvgpr_read_b32 {v(A1+32+i)}, {a(64+i)}")
    unpack8(A, T[0], A1 + 32, 8)
    for i in range(16): A.e(f"v_add_f32 {v(Hr[i])}, {v(Hr[i])}, {v(T[i])}")
    round_pairs(A, Hr, T)
    A.e(f"s_mov_b32 s33, {hex(f2u(-1.4426950408889634))}")
    for i in range(16): A.e(f"v_mul_f32 {v(T[i])}, s33, {v(Hr[i])}")
    for i in range(16): A.e(f"v_exp_f32 {v(T[i])}, {v(T[i])}")
    for i in range(16): A.e(f"v_add_f32 {v(T[i])}, 1.0, {v(T[i])}")
    for i in range(16): A.e(f"v_rcp_f32 {v(T[i])}, {v(T[i])}")
    for i in range(16): A.e(f"v_mul_f32 {v(Hr[i])}, {v(Hr[i])}, {v(T[i])}")
    round_pairs(A, Hr, T)
    for i in range(16): A.e(f"v_mul_f32 {v(Sr[i])}, {v(Sr[i])}, {v(Hr[i])}")
    round_pairs(A, Sr, T)
    for i in range(8): A.e(f"v_accvgpr_read_b32 {v(A1+32+i)}, {a(72+i)}")
    unpack8(A, T[0], A1 + 32, 8)
    for i in range(16): A.e(f"v_add_f32 {v(Sr[i])}, {v(Sr[i])}, {v(T[i])}")
    for i in range(8): A.e(f"v_cvt_pk_bf16_f32 {v(U[i])}, {v(Sr[2*i])}, {v(Sr[2*i+1])}")
    for nt in range(4):
        A.e(f"buffer_store_dwordx2 {v(U[2*nt], 2)}, v14, s[48:51], 0 offen offset:{32*nt}")
    stamp(A, 7)
    stamp_dump(A, name, 8)
    A.label(f"{name}_end")
    A.e("s_endpgm")

def finish(A, kernels, launches, path, fix=True):
    hdr = []
    for (k, g, b, lds) in launches:
        hdr.append(f"; @launch kernel={k} grid=({g},1,1) block=({b},1,1) lds={lds}")
    lines, rep = hazard.process(A.lines, fix=fix)
    out = hdr + ['.amdgcn_target "amdgcn-amd-amdhsa--gfx950"'] + lines
    B = Asm()
    for (k, vg, sg, acc) in kernels: kernel_desc(B, k, vg, sg, acc)
    out += B.lines
    open(path, "w").write("\n".join(out) + "\n")
    return rep

if __name__ == "__main__":
    mode = sys.argv[1] if len(sys.argv) > 1 else "attn"
    path = sys.argv[2] if len(sys.argv) > 2 else "k_attn.s"
    A = Asm()
    if mode == "attn":
        gen_k0(A, "k0_kernel")
        gen_attn(A, "attn_kernel", stamp=True)
        rep = finish(A, [("k0_kernel", 64, 102, 64), ("attn_kernel", 512, 102, 256)],
                     [("k0_kernel", 256, 256, 1024), ("attn_kernel", 256, 256, 135168)], path)
    if mode == "all":

        STAMP = len(sys.argv) > 3
        gen_k0(A, "k0_kernel"); gen_g1(A, "g1_kernel"); gen_g2(A, "g2_kernel"); gen_g3(A, "g3_kernel")
        gen_attn(A, "attn_kernel", stamp=False); gen_final(A, "final_kernel")
        rep = finish(A, [("k0_kernel", 64, 102, 64), ("g1_kernel", 512, 102, 256), ("g2_kernel", 512, 102, 256),
                         ("g3_kernel", 512, 102, 256), ("attn_kernel", 512, 102, 256), ("final_kernel", 512, 102, 256)],
                     [("k0_kernel", 256, 256, 1024), ("g1_kernel", 256, 256, 131072), ("g2_kernel", 256, 256, 131072),
                      ("g3_kernel", 256, 256, 131072), ("attn_kernel", 256, 256, 135168), ("final_kernel", 256, 256, 131072)], path)
    print("hazard fixes:", len(rep))
```

```python
import sys
from asmlib import *
import hazard
import gen as G
from gen import (MB, WS_XN, WS_LN1, WS_H, WS_X1, WS_H3, WS_O, WS_ST, WS_CS3, KA, load_ptr, srd, round_bf16, unpack8,
                 ln16, Tracker, MF, f2u, QSCALE, attn_stage, rowmax, qk_plain, k_read, v_read, Sreg, Preg, Oreg, Qreg,
                 gelu_inplace, round_pairs, C_GELU2, wq_slot,
                 V_LANE, V_KA, V_VA, V_KD, V_VD, V_T, V_S, V_P, V_NEG, V_L, V_ONE, V_Q, V_X, A_O, A_K, A_V,
                 LDS_K, LDS_V, S_WAVE, SRD_K, SRD_V, SRD_W, SRD_X, SRD_O, S_KOFF, S_VOFF, S_M0K, S_M0V, S_CNT, S_T)
WS_FL = 34 * MB
F0, F1, FC, F2, FO, F3 = range(6)
S_WS, S_NONCE, S_SPIN = 34, 36, 37
S_HEAD, S_QB = 38, 39
SRD_F, SRD_A1, SRD_A2, SRD_A3 = 44, 48, 52, 56
LDS_X = 131072
LDS_FLAG = 163840 - 64
V_I, V_G = 20, 21
V_L16 = V_T + 1
V_WQD = V_T
V_WKA = 236
NAME = G.KN + "_kernel"
CFG = dict(stamp=False, sc1=True)
def SC(): return " sc1" if CFG["sc1"] else ""

STN = {"n": 0, "names": [[], []], "part": 0}
def stamp(A, label):
    if not CFG["stamp"]: return
    STN["n"] += 1
    assert STN["n"] < 16, label
    STN["names"][STN["part"]].append(str(label))
    A.e(f"s_memtime {s(70 + 2*STN['n'], 2)}")
def stamp_part():
    STN["n"] = 0; STN["part"] = 1

def publish(A, phase, idx_sgpr, tag):
    A.e(f"s_cmp_lg_u32 {s(S_WAVE)}, 0")
    A.e(f"s_cbranch_scc1 L_pub_{tag}")
    A.e(f"s_lshl_b32 s60, {s(idx_sgpr)}, 2")
    A.e(f"s_add_u32 s60, s60, {1024*phase}")
    A.e(f"v_mov_b32 v30, s60")
    A.e(f"v_mov_b32 v31, {s(S_NONCE)}")
    A.e("s_mov_b64 exec, 1")
    A.e(f"buffer_store_dword v31, v30, {s(SRD_F,4)}, 0 offen sc1")
    A.e("s_mov_b64 exec, -1")
    A.label(f"L_pub_{tag}")

def poll_issue(A, vm, phase, first_sgpr, count, dst, addr, tag, lo_clamp=None):
    A.e(f"v_min_u32 {v(addr)}, {count-1}, {v(V_LANE)}")
    A.e(f"v_add_u32 {v(addr)}, {s(first_sgpr)}, {v(addr)}")
    if lo_clamp is not None:
        A.e(f"v_max_i32 {v(addr)}, 0, {v(addr)}")
        A.e(f"v_min_i32 {v(addr)}, {lo_clamp}, {v(addr)}")
    A.e(f"v_lshlrev_b32 {v(addr)}, 2, {v(addr)}")
    A.e(f"v_add_u32 {v(addr)}, {1024*phase}, {v(addr)}")
    A.e(f"buffer_load_dword {v(dst)}, {v(addr)}, {s(SRD_F,4)}, 0 offen sc1")
    vm.issue(('P', tag))

def poll_check(A, vm, dst, addr, tag):
    vm.wait(('P', tag))
    A.e(f"v_cmp_ne_u32 vcc, {s(S_NONCE)}, {v(dst)}")
    A.e("s_nop 4")
    A.e("s_cmp_eq_u64 vcc, 0")
    A.e(f"s_cbranch_scc1 L_pok_{tag}")
    A.e(f"s_mov_b32 {s(S_SPIN)}, 0")
    A.label(f"L_spin_{tag}")
    A.e(f"buffer_load_dword {v(dst)}, {v(addr)}, {s(SRD_F,4)}, 0 offen sc1")
    A.e(f"s_add_u32 {s(S_SPIN)}, {s(S_SPIN)}, 1")
    A.e(f"s_cmp_gt_u32 {s(S_SPIN)}, 0x200000")
    A.e(f"s_cbranch_scc1 {NAME}_end")
    A.e("s_waitcnt vmcnt(0)")
    A.e(f"v_cmp_ne_u32 vcc, {s(S_NONCE)}, {v(dst)}")
    A.e("s_nop 4")
    A.e("s_cmp_lg_u64 vcc, 0")
    A.e(f"s_cbranch_scc1 L_spin_{tag}")
    A.label(f"L_pok_{tag}")

class EA:
    def __init__(self, RA, WD, BV, ACC, WF, bring, sbase, ring, slot=4096):
        self.RA, self.WD, self.BV, self.ACC, self.WF, self.bring, self.sbase, self.ring, self.slot = RA, WD, BV, ACC, WF, bring, sbase, ring, slot

def ea_addr(A, E, t0=24):
    A.e(f"v_lshrrev_b32 v22, 2, {v(V_I)}")
    A.e(f"v_and_b32 v23, 3, {v(V_I)}")
    A.e(f"v_lshl_add_u32 v24, {v(V_G)}, 2, v22")
    A.e("v_lshrrev_b32 v25, 1, v24")
    A.e("v_and_b32 v25, 3, v25")
    A.e("v_lshlrev_b32 v24, 7, v24")
    A.e("v_lshl_add_u32 v24, v23, 3, v24")
    A.e(f"v_add_u32 v24, {s(E.sbase)}, v24")
    for nt in range(4):
        A.e(f"v_xor_b32 v26, {nt}, v25")
        A.e(f"v_lshl_add_u32 {v(E.RA+nt)}, v26, 5, v24")
    A.e(f"v_lshrrev_b32 v24, 3, {v(V_LANE)}")
    A.e(f"v_and_b32 v25, 7, {v(V_LANE)}")
    A.e(f"v_lshlrev_b32 v26, 1, {v(V_G)}")
    A.e("v_xor_b32 v25, v25, v26")
    A.e("v_lshlrev_b32 v25, 4, v25")
    A.e(f"v_lshl_add_u32 {v(E.WD)}, v24, 10, v25")

def ea_dmaW(A, vm, E, st, j):
    for jj in range(4):
        A.e(f"s_add_u32 m0, {s(E.sbase)}, {E.slot*(j % E.ring) + 1024*jj}")
        A.e(f"s_add_u32 {s(S_T)}, {s(st['wbase'])}, {st['woff'] + 8192*jj}")
        A.e(f"buffer_load_dwordx4 {v(E.WD)}, {s(st['wsrd'],4)}, {s(S_T)} offen lds")
        vm.issue(('W', st['id']))
def ea_loadB(A, vm, E, st, j):
    for ms in range(4):
        A.e(f"s_mov_b32 {s(S_T)}, {st['boff'] + st['bms']*ms}")
        A.e(f"buffer_load_dwordx4 {E.bring(j, ms)}, {v(st['bv'][ms])}, {s(st['bsrd'],4)}, {s(S_T)} offen{SC()}")
        vm.issue(('B', st['id']))
def ea_reads(E, j):
    return [f"ds_read_b64_tr_b16 {v(E.WF + 16*(j & 1) + 4*nt + 2*jh, 2)}, {v(E.RA+nt)} offset:{E.slot*(j % E.ring) + 2048*jh}"
            for nt in range(4) for jh in range(2)]
def ea_compute(A, vm, E, steps, depth, hooks={}):
    n = len(steps)
    vm.wait(('W', steps[0]['id']))
    for r in ea_reads(E, 0): A.e(r)
    for j in range(n):
        st = steps[j]
        if j in hooks: hooks[j]()
        tags = [('B', st['id'])] + ([('W', steps[j+1]['id'])] if j + 1 < n else [])
        vm.wait(*tags)
        rd = ea_reads(E, j + 1) if j + 1 < n else []
        A.e("s_waitcnt lgkmcnt(0)")
        g = 0
        for nt in range(4):
            for ms in range(4):
                D = v(st['acc'] + 16*ms + 4*nt, 4)
                A.e(f"{MF} {D}, {v(E.WF + 16*(j & 1) + 4*nt, 4)}, {E.bring(j, ms)}, {D}")
                if g % 2 == 0 and rd: A.e(rd.pop(0))
                g += 1
        if j + depth < n:
            ea_dmaW(A, vm, E, steps[j + depth], j + depth); ea_loadB(A, vm, E, steps[j + depth], j + depth)

def ea_reduce(A, accs, s_own, srcbase, setoff):
    A.e("s_nop 7")
    A.e("s_barrier")
    A.e(f"v_add_u32 v24, {s(s_own)}, {v(V_L16)}")
    for k, acc in enumerate(accs):
        for ms in range(4):
            for nt in range(4):
                A.e(f"ds_write_b128 v24, {v(acc + 16*ms + 4*nt, 4)} offset:{4096*ms + 1024*nt}")
        if k + 1 < len(accs): A.e(f"v_add_u32 v24, {setoff}, v24")
    A.e("s_waitcnt lgkmcnt(0)")
    A.e("s_barrier")
    A.e(f"s_lshl_b32 s60, {s(S_WAVE)}, 12")
    A.e(f"v_add_u32 v24, s60, {v(V_L16)}")
    for k, acc in enumerate(accs):
        A.e(f"v_add_u32 v25, {srcbase[0] + k*setoff}, v24")
        A.e(f"v_add_u32 v26, {srcbase[2] + k*setoff}, v24")
        for src_w in range(4):
            r, b = (25, srcbase[0]) if src_w < 2 else (26, srcbase[2])
            for nt in range(4):
                A.e(f"ds_read_b128 {v(acc + 16*src_w + 4*nt, 4)}, v{r} offset:{srcbase[src_w] - b + 1024*nt}")
    A.e("s_waitcnt lgkmcnt(0)")
    for acc in accs:
        for i in range(16):
            A.e(f"v_add_f32 {v(acc+i)}, {v(acc+i)}, {v(acc+16+i)}")
            A.e(f"v_add_f32 {v(acc+32+i)}, {v(acc+32+i)}, {v(acc+48+i)}")
        for i in range(16):
            A.e(f"v_add_f32 {v(acc+i)}, {v(acc+i)}, {v(acc+32+i)}")

def gen_fused(A):
    name = NAME
    kernel_begin(A, name)
    if CFG["stamp"]: A.e("s_memtime s[70:71]")
    A.e("s_memrealtime s[68:69]")
    A.e("s_cmp_ge_u32 s2, 256")
    A.e(f"s_cbranch_scc1 {name}_end")
    load_ptr(A, 4, "x"); load_ptr(A, S_WS, "ws"); load_ptr(A, 6, "dbg"); load_ptr(A, 60, "w3"); load_ptr(A, 62, "w1")
    load_ptr(A, 64, "k"); load_ptr(A, 66, "v")
    A.e(f"v_and_b32 {v(V_LANE)}, 63, v0")
    A.e("v_lshrrev_b32 v2, 6, v0")
    A.e(f"v_and_b32 {v(V_I)}, 15, {v(V_LANE)}")
    A.e(f"v_readfirstlane_b32 {s(S_WAVE)}, v2")
    A.e(f"v_lshrrev_b32 {v(V_G)}, 4, {v(V_LANE)}")
    A.e(f"v_lshlrev_b32 {v(V_L16)}, 4, {v(V_LANE)}")
    A.e(f"s_and_b32 {s(S_HEAD)}, s2, 7"); A.e(f"s_lshl_b32 {s(S_HEAD)}, {s(S_HEAD)}, 2")
    A.e(f"s_lshr_b32 {s(S_QB)}, s2, 3"); A.e(f"s_and_b32 {s(S_QB)}, {s(S_QB)}, 3"); A.e(f"s_add_u32 {s(S_HEAD)}, {s(S_HEAD)}, {s(S_QB)}")
    A.e(f"s_lshr_b32 {s(S_QB)}, s2, 5")
    R = 64
    vrow, vc, vx, vo, vw3 = R, R + 1, R + 2, R + 3, R + 4
    PK, FF, TT, CS = R + 8, R + 16, R + 32, R + 40
    A.e(f"v_lshrrev_b32 {v(vrow)}, 5, {v(V_LANE)}")
    A.e(f"v_lshl_add_u32 {v(vrow)}, v2, 1, {v(vrow)}")
    A.e("s_lshl_b32 s40, s2, 3")
    A.e(f"v_add_u32 {v(vrow)}, s40, {v(vrow)}")
    A.e(f"v_and_b32 {v(vc)}, 31, {v(V_LANE)}")
    A.e(f"v_lshlrev_b32 {v(vx)}, 10, {v(vrow)}")
    A.e(f"v_lshl_add_u32 {v(vx)}, {v(vc)}, 4, {v(vx)}")
    A.e("s_movk_i32 s40, 3584")
    A.e(f"v_mul_lo_u32 {v(vw3)}, v0, s40")
    A.e("s_lshl_b32 s41, s2, 4")
    A.e(f"v_add_u32 {v(vw3)}, s41, {v(vw3)}")
    A.e("s_waitcnt lgkmcnt(0)")
    vm = Tracker(A, "vmcnt", 63)
    srd(A, SRD_X, 4, 2 * MB)
    A.e(f"buffer_load_dwordx4 {v(PK,4)}, {v(vx)}, {s(SRD_X,4)}, 0 offen"); vm.issue('x')
    A.e(f"buffer_load_dwordx4 {v(PK+4,4)}, {v(vx)}, {s(SRD_X,4)}, 0 offen offset:512"); vm.issue('x')
    srd(A, SRD_A1, 6, 256)
    A.e("s_cmp_lg_u32 s2, 0"); A.e("s_cbranch_scc1 L_nononce")
    A.e(f"s_cmp_lg_u32 {s(S_WAVE)}, 0"); A.e("s_cbranch_scc1 L_nononce")
    A.e("s_or_b32 s40, s68, 1"); A.e("v_mov_b32 v30, s40"); A.e("v_mov_b32 v31, 0")
    A.e("s_mov_b64 exec, 1")
    A.e(f"buffer_store_dword v30, v31, {s(SRD_A1,4)}, 0 offen sc1")
    A.e("s_mov_b64 exec, -1")
    A.label("L_nononce")
    srd(A, SRD_W, 60, 512 * 3584)
    A.e(f"s_mov_b32 s40, {256*3584}")
    A.e(f"buffer_load_dwordx4 {v(CS,4)}, {v(vw3)}, {s(SRD_W,4)}, 0 offen"); vm.issue('cs')
    A.e(f"buffer_load_dwordx4 {v(CS+4,4)}, {v(vw3)}, {s(SRD_W,4)}, s40 offen"); vm.issue('cs')
    srd(A, SRD_F, S_WS, 8192, off=WS_FL)
    A.e(f"s_lshl_b32 s40, {s(S_HEAD)}, 19")
    srd(A, SRD_K, 64, 524288, offreg=40)
    srd(A, SRD_V, 66, 524288, offreg=40)
    load_ptr(A, 64, "wq"); load_ptr(A, 66, "w2")
    A.e(f"v_lshrrev_b32 v22, 2, {v(V_I)}")
    A.e(f"v_and_b32 v23, 3, {v(V_I)}")
    A.e("v_lshl_add_u32 v24, v22, 3, v23")
    A.e("v_lshlrev_b32 v24, 8, v24")
    A.e(f"v_xor_b32 v25, {v(V_G)}, {v(V_I)}")
    for ds in range(4):
        A.e(f"v_xor_b32 v26, {4*ds}, v25")
        A.e(f"v_lshl_add_u32 {v(V_KA+ds)}, v26, 4, v24")
    A.e(f"v_lshl_add_u32 v24, {v(V_G)}, 3, v22")
    A.e("v_lshlrev_b32 v24, 8, v24")
    A.e("v_lshl_add_u32 v24, v23, 3, v24")
    A.e(f"v_and_b32 v25, 1, {v(V_G)}")
    A.e("v_lshl_or_b32 v25, v25, 2, v22")
    for dt in range(8):
        A.e(f"v_xor_b32 v26, {dt}, v25")
        A.e(f"v_lshl_add_u32 {v(V_WKA+dt)}, v26, 5, v24")
        A.e(f"v_add_u32 {v(V_VA+dt)}, {LDS_V}, {v(V_WKA+dt)}")
    A.e(f"s_lshl_b32 s40, {s(S_WAVE)}, 2")
    A.e(f"v_or_b32 v25, s40, {v(V_G)}")
    A.e(f"v_xor_b32 v25, v25, {v(V_I)}")
    A.e("v_lshlrev_b32 v25, 4, v25")
    A.e(f"v_lshl_add_u32 v25, {v(V_G)}, 8, v25")
    A.e(f"s_lshl_b32 s41, {s(S_WAVE)}, 11")
    A.e(f"v_add_u32 {v(V_KD)}, s41, v25")
    A.e(f"s_and_b32 s40, {s(S_WAVE)}, 1"); A.e("s_lshl_b32 s40, s40, 2")
    A.e(f"v_or_b32 v25, s40, {v(V_G)}")
    A.e("v_lshlrev_b32 v25, 1, v25")
    A.e(f"v_xor_b32 v25, v25, {v(V_I)}")
    A.e("v_lshlrev_b32 v25, 4, v25")
    A.e(f"v_lshl_add_u32 v26, {v(V_G)}, 8, v25")
    A.e(f"v_add_u32 {v(V_VD)}, s41, v26")
    A.e(f"v_lshl_add_u32 v27, {v(V_G)}, 13, v25")
    A.e(f"s_lshl_b32 s42, {s(S_WAVE)}, 16")
    A.e(f"v_add_u32 {v(V_WQD)}, s42, v27")
    A.e(f"s_add_u32 {s(S_M0K)}, s41, {LDS_K}")
    A.e(f"s_add_u32 {s(S_M0V)}, s41, {LDS_V}")
    E1 = EA(RA=228, WD=232, BV=233, ACC=V_Q, WF=128, bring=lambda j, ms: a(16*(j % 4) + 4*ms, 4), sbase=61, ring=4)
    A.e(f"s_lshl_b32 s61, {s(S_WAVE)}, 14"); A.e(f"s_add_u32 s61, s61, {98304}")
    ea_addr(A, E1)
    A.e(f"v_lshrrev_b32 {v(vo)}, 4, {v(vrow)}")
    A.e(f"v_lshlrev_b32 {v(vo)}, 14, {v(vo)}")
    A.e(f"v_lshrrev_b32 v24, 2, {v(vc)}")
    A.e(f"v_lshl_add_u32 {v(vo)}, v24, 10, {v(vo)}")
    A.e(f"v_and_b32 v24, 15, {v(vrow)}")
    A.e(f"v_lshl_add_u32 {v(vo)}, v24, 4, {v(vo)}")
    A.e(f"v_and_b32 v24, 1, {v(vc)}")
    A.e(f"v_lshl_add_u32 {v(vo+2)}, v24, 9, {v(vo)}")
    A.e(f"v_bfe_u32 v24, {v(vc)}, 1, 1")
    A.e(f"v_lshl_add_u32 {v(vo+2)}, v24, 3, {v(vo+2)}")
    A.e(f"v_and_b32 v24, 3, {v(vc)}")
    A.e(f"v_lshl_add_u32 {v(vo)}, v24, 8, {v(vo)}")
    srd(A, SRD_O, S_WS, 4 * MB)
    A.e("v_mov_b32 v29, 0")
    A.e(f"buffer_load_dword v28, v29, {s(SRD_A1,4)}, 0 offen sc1"); vm.issue('n')
    stamp(A, 'pre_x')
    vm.wait('x')
    stamp(A, 'x_in')
    ln16(A, PK, FF, TT)
    A.e("s_mov_b32 s40, 8192")
    A.e(f"buffer_store_dwordx4 {v(PK,4)}, {v(vo)}, {s(SRD_O,4)}, 0 offen{SC()}"); vm.issue('st0')
    A.e(f"buffer_store_dwordx4 {v(PK+4,4)}, {v(vo)}, {s(SRD_O,4)}, s40 offen{SC()}"); vm.issue('st0')
    A.e("s_nop 1")
    ln16(A, PK, FF, TT)
    A.e(f"s_mov_b32 s40, {hex(WS_LN1)}")
    A.e(f"s_mov_b32 s41, {hex(WS_LN1 + 8192)}")
    for (h, so, o) in ((0, 40, 0), (2, 40, 256), (4, 41, 0), (6, 41, 256)):
        A.e(f"buffer_store_dwordx2 {v(PK+h,2)}, {v(vo+2)}, {s(SRD_O,4)}, s{so} offen offset:{o}{SC()}"); vm.issue('st0')
    stamp(A, 'ln_done')
    A.e("s_waitcnt lgkmcnt(0)")
    srd(A, SRD_W, 62, 512 * 1024)
    A.e(f"s_lshl_b32 s62, {s(S_WAVE)}, 17"); A.e(f"s_lshl_b32 s40, {s(S_QB)}, 7"); A.e("s_add_u32 s62, s62, s40")
    A.e(f"s_lshl_b32 s41, {s(S_HEAD)}, 16")
    srd(A, SRD_X, S_WS, 65536, off=WS_LN1, offreg=41)
    A.e(f"s_lshl_b32 s40, {s(S_WAVE)}, 12")
    A.e(f"v_add_u32 {v(E1.BV)}, s40, {v(V_L16)}")
    st1 = [dict(id=('g1', j), acc=E1.ACC, wsrd=SRD_W, wbase=62, woff=32*1024*j, bsrd=SRD_X, bv=[E1.BV]*4, boff=1024*j, bms=16384) for j in range(4)]
    for j in range(4): ea_dmaW(A, vm, E1, st1[j], j)
    stamp(A, 'w1_issued')
    vm.wait('st0')
    stamp(A, 'st0_done')
    A.e(f"v_readfirstlane_b32 {s(S_NONCE)}, v28")
    A.e(f"s_cmp_lg_u32 {s(S_NONCE)}, 0")
    A.e("s_cbranch_scc1 L_nonce_ok")
    A.e(f"s_mov_b32 {s(S_SPIN)}, 0")
    A.label("L_nonce_spin")
    A.e(f"buffer_load_dword v28, v29, {s(SRD_A1,4)}, 0 offen sc1")
    A.e(f"s_add_u32 {s(S_SPIN)}, {s(S_SPIN)}, 1")
    A.e(f"s_cmp_gt_u32 {s(S_SPIN)}, 0x200000")
    A.e(f"s_cbranch_scc1 {name}_end")
    A.e("s_waitcnt vmcnt(0)")
    A.e(f"v_readfirstlane_b32 {s(S_NONCE)}, v28")
    A.e(f"s_cmp_eq_u32 {s(S_NONCE)}, 0")
    A.e("s_cbranch_scc1 L_nonce_spin")
    A.label("L_nonce_ok")
    A.e("s_barrier")
    publish(A, F0, 2, "f0")
    unpack8(A, FF, CS, 8)
    for i in range(8): A.e(f"v_add_f32 {v(FF+i)}, {v(FF+i)}, {v(FF+8+i)}")
    for n in (8, 4, 2, 1):
        for i in range(8): A.e(f"v_add_f32 {v(FF+i)}, {v(FF+i)}, {v(FF+i)} row_ror:{n} row_mask:0xf bank_mask:0xf")
    for sw in ("16", "32"):
        for i in range(8): A.e(f"v_mov_b32 {v(FF+8+i)}, {v(FF+i)}")
        for i in range(8): A.e(f"v_permlane{sw}_swap_b32 {v(FF+i)}, {v(FF+8+i)}")
        for i in range(8): A.e(f"v_add_f32 {v(FF+i)}, {v(FF+i)}, {v(FF+8+i)}")
    A.e(f"v_lshlrev_b32 v24, 5, v2")
    A.e(f"v_add_u32 v24, {LDS_V + 3*8192}, v24")
    A.e(f"ds_write_b128 v24, {v(FF,4)}")
    A.e(f"ds_write_b128 v24, {v(FF+4,4)} offset:16")
    A.e(f"s_lshl_b32 s40, {s(S_HEAD)}, 3")
    poll_issue(A, vm, F0, 40, 8, 28, 29, "f0a")
    A.e(f"s_lshl_b32 s40, {s(S_QB)}, 5")
    poll_issue(A, vm, F0, 40, 32, 30, 31, "f0b")
    A.e("s_waitcnt lgkmcnt(0)")
    A.e("s_barrier")
    A.e("v_and_b32 v24, 7, v0")
    A.e("v_lshlrev_b32 v24, 2, v24")
    A.e(f"v_add_u32 v25, {LDS_V + 3*8192}, v24")
    for q in range(4): A.e(f"ds_read_b32 {v(FF+q)}, v25 offset:{32*q}")
    A.e("s_lshl_b32 s40, s2, 5")
    A.e("v_add_u32 v24, s40, v24")
    A.e("v_mov_b32 v25, 0x80000000")
    A.e("v_cmp_gt_u32 vcc, 8, v0")
    A.e("s_nop 1")
    A.e("v_cndmask_b32 v24, v25, v24, vcc")
    A.e("s_waitcnt lgkmcnt(0)")
    A.e(f"v_add_f32 {v(FF)}, {v(FF)}, {v(FF+1)}")
    A.e(f"v_add_f32 {v(FF+2)}, {v(FF+2)}, {v(FF+3)}")
    A.e(f"v_add_f32 {v(FF)}, {v(FF)}, {v(FF+2)}")
    srd(A, SRD_A1, S_WS, 1792 * 4, off=WS_CS3)
    A.e(f"buffer_store_dword {v(FF)}, v24, {s(SRD_A1,4)}, 0 offen{SC()}"); vm.issue('stc')
    stamp(A, 'cs_done')
    poll_check(A, vm, 28, 29, "f0a")
    stamp(A, 'f0a_ok')
    for j in range(4): ea_loadB(A, vm, E1, st1[j], j)
    poll_check(A, vm, 30, 31, "f0b")
    A.e(f"s_lshl_b32 s40, {s(S_HEAD)}, 8")
    A.e(f"s_add_u32 {s(SRD_A2)}, s64, s40"); A.e(f"s_addc_u32 {s(SRD_A2+1)}, s65, 0")
    A.e(f"s_sub_u32 {s(SRD_A2+2)}, {hex(512*4096*2)}, s40"); A.e(f"s_mov_b32 {s(SRD_A2+3)}, 0x20000")
    A.e(f"s_lshl_b32 s40, {s(S_QB)}, 4"); A.e(f"s_lshl_b32 s41, {s(S_WAVE)}, 2"); A.e("s_add_u32 s40, s40, s41")
    A.e("s_lshl_b32 s41, s40, 14")
    srd(A, SRD_A3, S_WS, 65536, off=WS_XN, offreg=41)
    XR, NX = V_S, 6
    def dmaWq(j):
        for jj in range(2):
            A.e(f"s_add_u32 m0, {s(S_M0K)}, {wq_slot(j) + 1024*jj}")
            A.e(f"s_mov_b32 {s(S_T)}, {(32*j + 4*jj) * 8192}")
            A.e(f"buffer_load_dwordx4 {v(V_WQD)}, {s(SRD_A2,4)}, {s(S_T)} offen lds"); vm.issue(('Wq', j))
    def loadX(j):
        for qs in range(4):
            A.e(f"s_mov_b32 {s(S_T)}, {qs*16384 + j*1024}")
            A.e(f"buffer_load_dwordx4 {v(XR + 16*(j % NX) + 4*qs, 4)}, {v(V_L16)}, {s(SRD_A3,4)}, {s(S_T)} offen{SC()}"); vm.issue(('X', j))
    def dmaKV(kind, n):
        if kind == 'K':
            A.e(f"s_add_u32 m0, {s(S_M0K)}, {8192*(n & 7)}")
            A.e(f"s_mov_b32 {s(S_T)}, {8192*n}")
            for jj in range(2):
                A.e(f"buffer_load_dwordx4 {v(V_KD)}, {s(SRD_K,4)}, {s(S_T)} offen offset:{1024*jj} lds"); vm.issue(('K', n))
        else:
            A.e(f"s_add_u32 m0, {s(S_M0V)}, {8192*(n & 7)}")
            A.e(f"s_mov_b32 {s(S_T)}, {8192*n}")
            for jj in range(2):
                A.e(f"buffer_load_dwordx4 {v(V_VD)}, {s(SRD_V,4)}, {s(S_T)} offen offset:{1024*jj} lds"); vm.issue(('V', n))
    A.e("s_barrier")
    for p in range(2):
        dmaWq(2*p); dmaWq(2*p+1); loadX(2*p); loadX(2*p+1)
    for j in range(4, 12): dmaWq(j)
    stamp(A, 'q_issued')
    for i in range(64): A.e(f"v_mov_b32 {v(E1.ACC+i)}, 0")
    ea_compute(A, vm, E1, st1, 4)
    stamp(A, 'g1_mm')
    ea_reduce(A, [E1.ACC], 61, [98304 + 16384*w for w in range(4)], 0)
    Rr = [E1.ACC + i for i in range(16)]; Tt = [E1.ACC + 16 + i for i in range(16)]
    A.e(f"v_mov_b32 v25, {hex(f2u(C_GELU2))}")
    round_pairs(A, Rr, Tt)
    gelu_inplace(A, Rr, Tt, 25)
    for i in range(8): A.e(f"v_cvt_pk_bf16_f32 {v(E1.ACC+32+i)}, {v(Rr[2*i])}, {v(Rr[2*i+1])}")
    A.e(f"s_lshl_b32 s41, {s(S_HEAD)}, 16")
    srd(A, SRD_O, S_WS, 65536, off=WS_H, offreg=41)
    A.e(f"s_lshl_b32 s41, {s(S_WAVE)}, 14"); A.e(f"s_lshl_b32 s43, {s(S_QB)}, 11"); A.e("s_add_u32 s41, s41, s43")
    A.e("s_add_u32 s43, s41, 1024")
    A.e(f"buffer_store_dwordx4 {v(E1.ACC+32,4)}, {v(V_L16)}, {s(SRD_O,4)}, s41 offen{SC()}"); vm.issue('sth')
    A.e(f"buffer_store_dwordx4 {v(E1.ACC+36,4)}, {v(V_L16)}, {s(SRD_O,4)}, s43 offen{SC()}"); vm.issue('sth')
    loadX(4); loadX(5)
    stamp(A, 'g1_done')
    for i in range(128): A.e(f"v_accvgpr_write_b32 {a(A_O+i)}, 0")
    def wread(j, dt, jh):
        base = wq_slot(j)
        addr = V_WKA if base < LDS_V else V_VA
        off = base - (0 if base < LDS_V else LDS_V)
        return f"ds_read_b64_tr_b16 {a(A_K + 32*(j & 1) + 4*dt + 2*jh, 2)}, {v(addr + dt)} offset:{off + 1024*jh}"
    E2 = EA(RA=228, WD=232, BV=233, ACC=V_S, WF=96, bring=lambda j, ms: a(128 + 16*(j % 4) + 4*ms, 4), sbase=61, ring=4)
    st2 = [dict(id=('g2', j), acc=E2.ACC, wsrd=SRD_W, wbase=62, woff=32*1024*j, bsrd=SRD_X, bv=[E2.BV+ms for ms in range(4)], boff=1024*j, bms=0) for j in range(4)]
    vm.wait(('Wq', 0))
    A.e("s_barrier")
    for j in range(12, 16): dmaWq(j)
    for dt in range(8):
        for jh in range(2): A.e(wread(0, dt, jh))
    for j in range(16):
        pre = [[] for _ in range(32)]
        if j % 2 == 0:
            need = [('Wq', x) for x in (j + 1, j + 2) if x < 16]
            extra = ['sth', 'stc'] if j == 4 else []
            vm.wait(*need, ('X', j), ('X', j + 1), *extra)
            A.e("s_barrier")
            if j == 4:
                A.e(f"s_lshl_b32 s40, {s(S_HEAD)}, 3"); A.e(f"s_add_u32 s40, s40, {s(S_QB)}")
                publish(A, F1, 40, "f1")
                publish(A, FC, 2, "fc")
                for n in range(4): dmaKV('K', n)
            if j == 8:
                for n in range(4): dmaKV('V', n)
            if j == 12:
                A.e(f"s_lshl_b32 s61, {s(S_WAVE)}, 14"); A.e(f"s_add_u32 s61, s61, 32768")
                A.e(f"s_cmp_lt_u32 {s(S_WAVE)}, 2"); A.e(f"s_cselect_b32 s40, 0, {131072 - 32768 - 32768}"); A.e("s_add_u32 s61, s61, s40")
                ea_addr(A, E2)
                srd(A, SRD_W, 66, 512 * 1024)
                A.e(f"s_lshl_b32 s62, {s(S_WAVE)}, 17"); A.e(f"s_lshl_b32 s40, {s(S_QB)}, 7"); A.e("s_add_u32 s62, s62, s40")
                for jx in range(4): ea_dmaW(A, vm, E2, st2[jx], jx)
            if j == 14:
                A.e(f"s_lshl_b32 s40, {s(S_HEAD)}, 3"); A.e("s_sub_u32 s40, s40, 8")
                poll_issue(A, vm, F1, 40, 24, 28, 29, "f1", lo_clamp=255)
        if j + 1 < 16:
            for dt in range(8):
                for jh in range(2): pre[2*(2*dt+jh)].append(wread(j + 1, dt, jh))
        for g in range(32):
            dt, qs = g >> 2, g & 3
            if qs == 0:
                issued_now = sum(len(pre[x]) for x in range(g)) if j + 1 < 16 else 0
                cnt = min(15, 16 - 2 * (dt + 1) + issued_now)
                A.e(f"s_waitcnt lgkmcnt({cnt})")
            D = a(Oreg(dt, qs), 4)
            A.e(f"{MF} {D}, {a(A_K + 32*(j & 1) + 4*dt, 4)}, {v(XR + 16*(j % NX) + 4*qs, 4)}, {D}")
            for x in pre[g]: A.e(x)
        if j + NX < 16: loadX(j + NX)
    stamp(A, 'qproj_done')
    srd(A, SRD_X, S_WS, 2 * MB, off=WS_H)
    A.e(f"s_lshl_b32 s41, {s(S_HEAD)}, 16")
    srd(A, SRD_O, S_WS, 65536, off=WS_X1, offreg=41)
    srd(A, SRD_A1, S_WS, 65536, off=WS_XN, offreg=41)
    srd(A, SRD_A2, S_WS, 2048 * 64, off=WS_ST)
    A.e(f"s_lshr_b32 s43, {s(S_WAVE)}, 1"); A.e("s_add_u32 s43, s43, 1")
    A.e(f"s_and_b32 s42, {s(S_WAVE)}, 1")
    A.e("s_sub_u32 s41, 0, s43")
    A.e("s_cmp_eq_u32 s42, 0")
    A.e("s_cselect_b32 s43, s41, s43")
    A.e(f"s_lshl_b32 s42, {s(S_HEAD)}, 6"); A.e("s_add_u32 s43, s43, s42")
    A.e(f"s_lshl_b32 s42, {s(S_WAVE)}, 12")
    for ms in range(4):
        A.e(f"v_add_u32 v24, s43, {v(V_I)}")
        if ms: A.e(f"v_add_u32 v24, {16*ms}, v24")
        A.e("v_lshrrev_b32 v25, 4, v24")
        A.e("v_lshlrev_b32 v25, 14, v25")
        A.e("v_and_b32 v26, 15, v24")
        A.e("v_lshl_add_u32 v25, v26, 4, v25")
        A.e(f"v_lshl_add_u32 v25, {v(V_G)}, 8, v25")
        A.e("v_add_u32 v25, s42, v25")
        A.e("v_cmp_gt_u32 vcc, 0x800, v24")
        A.e("v_mov_b32 v26, 0x80000000")
        A.e(f"v_cndmask_b32 {v(E2.BV+ms)}, v26, v25, vcc")
    A.e(f"v_lshrrev_b32 v24, 1, {v(V_G)}")
    A.e("v_lshlrev_b32 v24, 8, v24")
    A.e(f"v_lshl_add_u32 v24, {v(V_I)}, 4, v24")
    A.e(f"v_and_b32 v25, 1, {v(V_G)}")
    A.e("v_lshl_add_u32 v24, v25, 3, v24")
    A.e(f"s_lshl_b32 s42, {s(S_WAVE)}, 14"); A.e(f"s_lshl_b32 s43, {s(S_QB)}, 11"); A.e("s_add_u32 s42, s42, s43")
    A.e("v_add_u32 v24, s42, v24")
    XRES = 128
    poll_check(A, vm, 28, 29, "f1")
    for j in range(4): ea_loadB(A, vm, E2, st2[j], j)
    for nt in range(4):
        A.e(f"buffer_load_dwordx2 {v(XRES + 2*nt, 2)}, v24, {s(SRD_A1,4)}, 0 offen offset:{1024*(nt>>1) + 512*(nt&1)}{SC()}"); vm.issue('res')
    stamp(A, 'g2_loads')
    A.e(f"s_mov_b32 {s(S_T)}, {hex(f2u(QSCALE))}")
    T = 136
    for qs in range(4):
        for ds in range(4):
            for h in range(2):
                for r in range(4): A.e(f"v_accvgpr_read_b32 {v(T + 4*h + r)}, {a(Oreg(2*ds + h, qs) + r)}")
            for i in range(8): A.e(f"v_mul_f32 {v(T+i)}, {s(S_T)}, {v(T+i)}")
            q = Qreg(qs, ds)
            for i in range(4): A.e(f"v_cvt_pk_bf16_f32 {v(q+i)}, {v(T+2*i)}, {v(T+2*i+1)}")
            A.e(f"v_permlane32_swap_b32 {v(q)}, {v(q+2)}")
            A.e(f"v_permlane32_swap_b32 {v(q+1)}, {v(q+3)}")
            A.e(f"v_permlane16_swap_b32 {v(q)}, {v(q+2)}")
            A.e(f"v_permlane16_swap_b32 {v(q+1)}, {v(q+3)}")
    stamp(A, 'qconv')
    for i in range(64): A.e(f"v_mov_b32 {v(E2.ACC+i)}, 0")
    ea_compute(A, vm, E2, st2, 4)
    stamp(A, 'g2_mm')
    sb2 = [32768, 49152, 131072, 147456]
    ea_reduce(A, [E2.ACC], 61, sb2, 0)
    A.e("s_barrier")
    for n in range(4, 7): dmaKV('K', n)
    dmaKV('V', 4)
    Rr = [E2.ACC + i for i in range(16)]; Tt = [E2.ACC + 16 + i for i in range(16)]
    round_pairs(A, Rr, Tt)
    vm.wait('res')
    unpack8(A, E2.ACC + 16, XRES, 8)
    for i in range(16): A.e(f"v_add_f32 {v(Rr[i])}, {v(Rr[i])}, {v(Tt[i])}")
    P = E2.ACC + 32
    for i in range(8): A.e(f"v_cvt_pk_bf16_f32 {v(P+i)}, {v(Rr[2*i])}, {v(Rr[2*i+1])}")
    A.e(f"s_lshl_b32 s41, {s(S_WAVE)}, 14"); A.e(f"s_lshl_b32 s43, {s(S_QB)}, 11"); A.e("s_add_u32 s41, s41, s43")
    A.e("s_add_u32 s43, s41, 1024")
    A.e(f"buffer_store_dwordx4 {v(P,4)}, {v(V_L16)}, {s(SRD_O,4)}, s41 offen{SC()}"); vm.issue('stx1')
    A.e(f"buffer_store_dwordx4 {v(P+4,4)}, {v(V_L16)}, {s(SRD_O,4)}, s43 offen{SC()}"); vm.issue('stx1')
    unpack8(A, E2.ACC, P, 8)
    A.e(f"v_add_f32 v26, {v(Rr[0])}, {v(Rr[1])}")
    A.e(f"v_mul_f32 v27, {v(Rr[0])}, {v(Rr[0])}")
    A.e(f"v_fmac_f32 v27, {v(Rr[1])}, {v(Rr[1])}")
    for i in range(2, 16):
        A.e(f"v_add_f32 v26, v26, {v(Rr[i])}")
        A.e(f"v_fmac_f32 v27, {v(Rr[i])}, {v(Rr[i])}")
    for sw in ("16", "32"):
        A.e("v_mov_b32 v28, v26"); A.e("v_mov_b32 v29, v27")
        A.e(f"v_permlane{sw}_swap_b32 v26, v28"); A.e(f"v_permlane{sw}_swap_b32 v27, v29")
        A.e("v_add_f32 v26, v26, v28"); A.e("v_add_f32 v27, v27, v29")
    A.e(f"s_lshl_b32 s41, {s(S_HEAD)}, 6"); A.e(f"s_lshl_b32 s43, {s(S_WAVE)}, 4"); A.e("s_add_u32 s41, s41, s43")
    A.e(f"v_add_u32 v24, s41, {v(V_I)}")
    A.e("v_lshlrev_b32 v24, 6, v24")
    A.e(f"s_lshl_b32 s43, {s(S_QB)}, 3")
    A.e("v_add_u32 v24, s43, v24")
    A.e("v_mov_b32 v25, 0x80000000")
    A.e(f"v_cmp_gt_u32 vcc, 16, {v(V_LANE)}")
    A.e("s_nop 1")
    A.e("v_cndmask_b32 v24, v25, v24, vcc")
    A.e(f"buffer_store_dwordx2 v[26:27], v24, {s(SRD_A2,4)}, 0 offen{SC()}"); vm.issue('stx1')
    stamp(A, 'g2_done')
    return vm, dmaKV


def gen_attention(A, vm, dmaKV):
    name = NAME
    for i in range(4): A.e(f"v_mov_b32 {v(V_ONE+i)}, 0x3f803f80")
    vm.wait(('K', 0), ('K', 1))
    qk_plain(A, 0, 0)
    for j in range(4): A.e(k_read(j, 1))
    for i in range(128): A.e(f"v_accvgpr_write_b32 {a(A_O+i)}, 0")
    for i in range(16): A.e(f"v_mov_b32 {v(V_L+i)}, 0")
    for qs in range(4):
        m = V_X + qs
        rowmax(A, qs, 0, m, V_X + 4)
        for r in range(4): A.e(f"v_sub_f32 {v(V_NEG + 4*qs + r)}, 0, {v(m)}")
        for ks in range(2):
            for r in range(4):
                A.e(f"v_sub_f32 {v(Sreg(0, ks, qs) + r)}, {v(Sreg(0, ks, qs) + r)}, {v(m)}")
    A.e(f"s_mov_b32 {s(S_KOFF)}, {8192*7}")
    A.e(f"s_mov_b32 {s(S_VOFF)}, {8192*5}")
    A.e("s_waitcnt lgkmcnt(3)")
    n_after = vm.count_after('stx1')
    attn_stage(A, 0, do_pv=False, first_cvt=False, vm=n_after + 4)
    A.e(f"s_lshl_b32 s40, {s(S_HEAD)}, 3"); A.e(f"s_add_u32 s40, s40, {s(S_QB)}")
    publish(A, F2, 40, "f2")
    A.e(f"s_mov_b32 {s(S_CNT)}, 0")
    A.raw(".p2align 6")
    A.label(f"{name}_loop")
    for n in range(1, 9): attn_stage(A, n)
    A.e(f"s_add_u32 {s(S_CNT)}, {s(S_CNT)}, 1")
    A.e(f"s_cmp_lt_u32 {s(S_CNT)}, 7")
    A.e(f"s_cbranch_scc1 {name}_loop")
    for n in range(57, 64):
        last = (n == 63)
        attn_stage(A, n, do_qk=not last, kread_hi=not last, kread_lo=(n < 62), dma=(n <= 58),
                   barrier=(n % 2 == 0), vm={58: 16, 60: 8, 62: 0}.get(n, 0), tail_cvt=last)
    attn_stage(A, 64, do_qk=False, do_sm=False, kread_hi=False, kread_lo=False, dma=False, barrier=False, first_cvt=False)
    stamp(A, 'loop_end')
    vm2 = Tracker(A, "vmcnt", 63)
    A.e("s_and_b32 s42, s2, 7"); A.e("s_lshl_b32 s42, s42, 1"); A.e("s_lshr_b32 s40, s2, 3"); A.e("s_and_b32 s40, s40, 1"); A.e("s_add_u32 s42, s42, s40")
    A.e("s_lshr_b32 s43, s2, 4")
    A.e("s_lshl_b32 s40, s42, 4")
    poll_issue(A, vm2, F2, 40, 16, 22, 23, "f2")
    A.e("s_lshl_b32 s40, s43, 4")
    poll_issue(A, vm2, FC, 40, 16, 24, 25, "fc", lo_clamp=255)
    load_ptr(A, 62, "w3"); load_ptr(A, 64, "wo"); load_ptr(A, 66, "w4")
    A.e("s_nop 7")
    A.e(f"s_mov_b32 {s(S_T)}, 0x4e800000")
    A.e(f"v_cmp_nge_f32 vcc, {s(S_T)}, {v(V_L)}")
    A.e("s_mov_b64 s[40:41], vcc")
    for qs in range(1, 4):
        A.e(f"v_cmp_nge_f32 vcc, {s(S_T)}, {v(V_L + 4*qs)}")
        A.e("s_or_b64 s[40:41], s[40:41], vcc")
    A.e("s_cmp_lg_u64 s[40:41], 0")
    A.e("s_cselect_b32 s40, 1, 0")
    A.e(f"v_mov_b32 {v(V_X)}, s40")
    A.e(f"s_lshl_b32 s41, {s(S_WAVE)}, 2")
    A.e(f"s_add_u32 s41, s41, {LDS_FLAG}")
    A.e(f"v_mov_b32 {v(V_X+1)}, s41")
    A.e(f"ds_write_b32 {v(V_X+1)}, {v(V_X)}")
    A.e("s_waitcnt lgkmcnt(0)")
    A.e("s_barrier")
    A.e(f"v_mov_b32 {v(V_X+1)}, {LDS_FLAG}")
    A.e(f"ds_read_b128 {v(V_X+4,4)}, {v(V_X+1)}")
    A.e("s_waitcnt lgkmcnt(0)")
    A.e(f"v_or3_b32 {v(V_X)}, {v(V_X+4)}, {v(V_X+5)}, {v(V_X+6)}")
    A.e(f"v_or_b32 {v(V_X)}, {v(V_X)}, {v(V_X+7)}")
    A.e(f"v_readfirstlane_b32 s40, {v(V_X)}")
    A.e("s_cmp_lg_u32 s40, 0")
    A.e(f"s_cbranch_scc1 {name}_slow")
    A.label(f"{name}_store")
    return vm2

def gen_slow(A):
    name = NAME
    A.label(f"{name}_slow")
    for i in range(128): A.e(f"v_accvgpr_write_b32 {a(A_O+i)}, 0")
    for i in range(16): A.e(f"v_mov_b32 {v(V_L+i)}, 0")
    for qs in range(4): A.e(f"v_mov_b32 {v(V_NEG+qs)}, 0xff7fffff")
    A.e(f"s_mov_b32 {s(S_KOFF)}, 0")
    A.label(f"{name}_slowloop")
    A.e("s_barrier")
    A.e(f"s_mov_b32 m0, {s(S_M0K)}")
    A.e("s_nop 0")
    for jj in range(2): A.e(f"buffer_load_dwordx4 {v(V_KD)}, {s(SRD_K,4)}, {s(S_KOFF)} offen offset:{1024*jj} lds")
    A.e(f"s_mov_b32 m0, {s(S_M0V)}")
    A.e("s_nop 0")
    for jj in range(2): A.e(f"buffer_load_dwordx4 {v(V_VD)}, {s(SRD_V,4)}, {s(S_KOFF)} offen offset:{1024*jj} lds")
    A.e("s_waitcnt vmcnt(0)")
    A.e("s_barrier")
    qk_plain(A, 0, 0)
    for dt in range(8):
        for jh in range(2): A.e(v_read(dt, jh, 0))
    A.e("s_nop 7")
    for qs in range(4):
        mn, al = V_X, V_X + 1
        rowmax(A, qs, 0, mn, V_X + 4)
        A.e(f"v_max_f32 {v(mn)}, {v(mn)}, {v(V_NEG+qs)}")
        A.e(f"v_sub_f32 {v(al)}, {v(V_NEG+qs)}, {v(mn)}")
        A.e(f"v_exp_f32 {v(al)}, {v(al)}")
        A.e(f"v_mov_b32 {v(V_NEG+qs)}, {v(mn)}")
        for ks in range(2):
            for r in range(4):
                x = Sreg(0, ks, qs) + r
                A.e(f"v_sub_f32 {v(x)}, {v(x)}, {v(mn)}")
                A.e(f"v_exp_f32 {v(x)}, {v(x)}")
        for ks in range(2):
            for h in range(2):
                A.e(f"v_cvt_pk_bf16_f32 {v(Preg(0, qs) + 2*ks + h)}, {v(Sreg(0, ks, qs) + 2*h)}, {v(Sreg(0, ks, qs) + 2*h + 1)}")
        for r in range(4): A.e(f"v_mul_f32 {v(V_L + 4*qs + r)}, {v(al)}, {v(V_L + 4*qs + r)}")
        for dt in range(8):
            for r in range(4): A.e(f"v_accvgpr_read_b32 {v(V_X+8+r)}, {a(Oreg(dt, qs) + r)}")
            for r in range(4): A.e(f"v_mul_f32 {v(V_X+8+r)}, {v(al)}, {v(V_X+8+r)}")
            for r in range(4): A.e(f"v_accvgpr_write_b32 {a(Oreg(dt, qs) + r)}, {v(V_X+8+r)}")
    A.e("s_waitcnt lgkmcnt(0)")
    A.e("s_nop 3")
    for dt in range(8):
        for qs in range(4):
            D = a(Oreg(dt, qs), 4)
            A.e(f"{MF} {D}, {a(A_V + 4*dt, 4)}, {v(Preg(0, qs), 4)}, {D}")
    for qs in range(4):
        D = v(V_L + 4 * qs, 4)
        A.e(f"{MF} {D}, {v(V_ONE, 4)}, {v(Preg(0, qs), 4)}, {D}")
    A.e(f"s_add_u32 {s(S_KOFF)}, {s(S_KOFF)}, 8192")
    A.e(f"s_cmp_lt_u32 {s(S_KOFF)}, 524288")
    A.e(f"s_cbranch_scc1 {name}_slowloop")
    A.e("s_nop 7")
    A.e("s_barrier")
    A.e(f"s_branch {name}_store")

def gen_tail(A, vm):
    name = NAME
    S_RB, S_CB = 42, 43
    RA, RA2 = 4, 12
    A.e(f"v_lshrrev_b32 v26, 2, {v(V_I)}")
    A.e(f"v_and_b32 v27, 3, {v(V_I)}")
    A.e(f"v_lshl_add_u32 v28, {v(V_G)}, 2, v26")
    A.e("v_and_b32 v29, 7, v28")
    A.e("v_lshlrev_b32 v28, 8, v28")
    A.e("v_lshl_add_u32 v28, v27, 3, v28")
    RC = 232
    for qs in range(4): A.e(f"v_rcp_f32 {v(RC+qs)}, {v(V_L + 4*qs)}")
    W3D = 236
    L16 = 238
    A.e(f"v_mov_b32 {v(L16)}, {v(V_L16)}")
    A.e(f"v_mov_b32 {v(239)}, {v(V_I)}"); A.e(f"v_mov_b32 {v(240)}, {v(V_G)}")
    A.e("s_movk_i32 s40, 3584")
    A.e(f"s_lshl_b32 s41, {s(S_WAVE)}, 3")
    for jj in range(2):
        A.e(f"v_add_u32 v30, {4*jj}, {v(V_G)}")
        A.e("v_lshlrev_b32 v31, 1, v30")
        A.e(f"v_xor_b32 v31, v31, {v(V_I)}")
        A.e("v_lshlrev_b32 v31, 4, v31")
        A.e("v_add_u32 v30, s41, v30")
        A.e("v_mul_lo_u32 v30, v30, s40")
        A.e(f"v_add_u32 {v(W3D+jj)}, v30, v31")
    A.e("s_waitcnt lgkmcnt(0)")
    A.e(f"s_lshl_b32 s40, {s(S_CB)}, 8")
    A.e(f"s_add_u32 {s(SRD_W)}, s62, s40"); A.e(f"s_addc_u32 {s(SRD_W+1)}, s63, 0")
    A.e(f"s_sub_u32 {s(SRD_W+2)}, {hex(512*3584)}, s40"); A.e(f"s_mov_b32 {s(SRD_W+3)}, 0x20000")
    A.e(f"s_cmp_lt_u32 {s(S_CB)}, 14")
    A.e(f"s_cselect_b32 {s(SRD_W+2)}, {s(SRD_W+2)}, 0")
    A.e(f"s_lshl_b32 s63, {s(S_WAVE)}, 11")
    def dmaW(j):
        for jj in range(2):
            A.e(f"s_add_u32 m0, s63, {8192*j + 1024*jj}")
            A.e(f"s_mov_b32 {s(S_T)}, {32*j*3584}")
            A.e(f"buffer_load_dwordx4 {v(W3D+jj)}, {s(SRD_W,4)}, {s(S_T)} offen lds"); vm.issue(('W', j))
    for j in range(8): dmaW(j)
    for nt in range(8):
        A.e(f"v_xor_b32 v30, {nt}, v29")
        A.e(f"v_lshl_add_u32 {v(RA+nt)}, v30, 5, v28")
    stamp(A, 'w3_issued')
    A.e(f"s_lshl_b32 s40, {s(S_QB)}, 4"); A.e(f"s_lshl_b32 s41, {s(S_WAVE)}, 2"); A.e("s_add_u32 s40, s40, s41")
    A.e("s_lshl_b32 s41, s40, 17"); A.e(f"s_lshl_b32 s40, {s(S_HEAD)}, 12"); A.e("s_add_u32 s41, s41, s40")
    srd(A, SRD_O, S_WS, 4 * 131072, off=WS_O, offreg=41)
    T = V_S
    for qs in range(4):
        for u in range(4):
            t = T + 12 * ((qs * 4 + u) & 3)
            for h in range(2):
                for r in range(4): A.e(f"v_accvgpr_read_b32 {v(t + 4*h + r)}, {a(Oreg(2*u + h, qs) + r)}")
            for i in range(8): A.e(f"v_mul_f32 {v(t+i)}, {v(RC+qs)}, {v(t+i)}")
            for i in range(4): A.e(f"v_cvt_pk_bf16_f32 {v(t+8+i)}, {v(t+2*i)}, {v(t+2*i+1)}")
            A.e(f"s_mov_b32 {s(S_T)}, {qs*131072 + u*1024}")
            A.e(f"buffer_store_dwordx4 {v(t+8,4)}, {v(L16)}, {s(SRD_O,4)}, {s(S_T)} offen{SC()}"); vm.issue('sto')
    stamp(A, 'o_stored')
    for nt in range(8): A.e(f"v_add_u32 {v(RA2+nt)}, 0x10000, {v(RA+nt)}")
    poll_check(A, vm, 22, 23, "f2")
    poll_check(A, vm, 24, 25, "fc")
    A.e(f"s_lshl_b32 s40, {s(S_RB)}, 3"); A.e(f"s_lshl_b32 s41, {s(S_WAVE)}, 1"); A.e("s_add_u32 s40, s40, s41")
    A.e("s_lshl_b32 s41, s40, 14")
    srd(A, SRD_X, S_WS, 32768, off=WS_X1, offreg=41)
    A.e(f"s_mul_i32 s41, s40, {56*1024}")
    srd(A, SRD_O, S_WS, 2 * 56 * 1024, off=WS_H3, offreg=41)
    srd(A, SRD_A1, S_WS, 2048 * 64, off=WS_ST)
    srd(A, SRD_A2, S_WS, 1792 * 4, off=WS_CS3)
    A.e(f"s_cmp_lt_u32 {s(S_CB)}, 14")
    A.e(f"s_cselect_b32 {s(SRD_O+2)}, {s(SRD_O+2)}, 0")
    XB = 96
    def loadX(j):
        for ms in range(2):
            A.e(f"s_mov_b32 {s(S_T)}, {ms*16384 + j*1024}")
            A.e(f"buffer_load_dwordx4 {v(XB + 8*j + 4*ms, 4)}, {v(L16)}, {s(SRD_X,4)}, {s(S_T)} offen{SC()}"); vm.issue(('X', j))
    for j in range(8): loadX(j)
    for j in range(8, 16): dmaW(j)
    for j in range(8, 16): loadX(j)
    stamp(A, 'g3_issued')
    ACC = 32
    for i in range(64): A.e(f"v_mov_b32 {v(ACC+i)}, 0")
    def wread(j, nt, jh):
        base = 8192 * j
        addr, off = (RA, base) if base < 65536 else (RA2, base - 65536)
        return f"ds_read_b64_tr_b16 {a(32*(j & 1) + 4*nt + 2*jh, 2)}, {v(addr+nt)} offset:{off + 4096*jh}"
    vm.wait(('W', 2), ('X', 1), 'sto')
    A.e("s_barrier")
    A.e(f"s_lshl_b32 s40, {s(S_QB)}, 5"); A.e(f"s_add_u32 s40, s40, {s(S_HEAD)}")
    publish(A, FO, 40, "fo")
    stamp(A, 'g3_start')
    for nt in range(8):
        for jh in range(2): A.e(wread(0, nt, jh))
    ST, CSR = 224, 64
    for j in range(16):
        if j % 2 == 0 and j > 0:
            need = [('W', x) for x in (j + 1, j + 2) if x < 16]
            vm.wait(*need, ('X', j), ('X', j + 1))
            A.e("s_barrier")
        if j == 10:
            A.e(f"s_lshl_b32 s40, {s(S_RB)}, 7"); A.e(f"s_lshl_b32 s41, {s(S_WAVE)}, 5"); A.e("s_add_u32 s40, s40, s41")
            A.e(f"v_add_u32 v24, s40, {v(239)}")
            A.e("v_lshlrev_b32 v24, 6, v24")
            for q in range(4):
                A.e(f"buffer_load_dwordx4 {a(96 + 4*q, 4)}, v24, {s(SRD_A1,4)}, 0 offen offset:{16*q}{SC()}"); vm.issue('st')
                A.e(f"buffer_load_dwordx4 {a(112 + 4*q, 4)}, v24, {s(SRD_A1,4)}, 0 offen offset:{1024 + 16*q}{SC()}"); vm.issue('st')
            A.e(f"s_lshl_b32 s40, {s(S_CB)}, 9")
            A.e(f"v_lshlrev_b32 v25, 4, {v(240)}")
            A.e("v_add_u32 v25, s40, v25")
            for nt in range(8):
                A.e(f"buffer_load_dwordx4 {a(CSR + 4*nt, 4)}, v25, {s(SRD_A2,4)}, 0 offen offset:{64*nt}{SC()}"); vm.issue('st')
            A.e(f"s_lshr_b32 s40, {s(S_HEAD)}, 2"); A.e("s_lshl_b32 s40, s40, 5")
            A.e(f"v_mov_b32 {v(V_LANE)}, {v(L16)}"); A.e(f"v_lshrrev_b32 {v(V_LANE)}, 4, {v(V_LANE)}")
            poll_issue(A, vm, FO, 40, 32, 28, 29, "fo")
        rd = [wread(j + 1, nt, jh) for nt in range(8) for jh in range(2)] if j + 1 < 16 else []
        issued = 0
        for nt in range(8):
            cnt = min(15, 16 - 2*(nt + 1) + issued)
            A.e(f"s_waitcnt lgkmcnt({cnt})")
            for ms in range(2):
                D = v(ACC + 32*ms + 4*nt, 4)
                A.e(f"{MF} {D}, {a(32*(j & 1) + 4*nt, 4)}, {v(XB + 8*j + 4*ms, 4)}, {D}")
                if rd: A.e(rd.pop(0)); issued += 1
    stamp(A, 'g3_mm')
    A.e("s_barrier")
    A.e(f"v_mov_b32 {v(V_I)}, {v(239)}"); A.e(f"v_mov_b32 {v(V_G)}, {v(240)}"); A.e(f"v_mov_b32 {v(V_L16)}, {v(L16)}")
    EF = EA(RA=4, WD=8, BV=9, ACC=32, WF=160, bring=lambda j, ms: a(128 + 16*(j % 7) + 4*ms, 4), sbase=61, ring=8)
    A.e(f"s_lshl_b32 s61, {s(S_WAVE)}, 15")
    ea_addr(A, EF)
    srd(A, SRD_W, 64, 4096 * 1024)
    srd(A, SRD_A3, 66, 1792 * 1024)
    A.e(f"s_lshl_b32 s41, {s(S_HEAD)}, 19")
    srd(A, SRD_X, S_WS, 4 * 131072, off=WS_O, offreg=41)
    A.e(f"s_lshl_b32 s40, {s(S_QB)}, 7")
    A.e(f"s_lshl_b32 s62, {s(S_WAVE)}, 20"); A.e("s_add_u32 s62, s62, s40")
    A.e(f"s_mul_i32 s63, {s(S_WAVE)}, {448*1024}"); A.e("s_add_u32 s63, s63, s40")
    A.e(f"s_lshl_b32 s40, {s(S_WAVE)}, 15")
    A.e(f"v_add_u32 {v(EF.BV)}, s40, {v(V_L16)}")
    A.e(f"s_mul_i32 s40, {s(S_WAVE)}, {14*1024}")
    A.e(f"v_add_u32 {v(EF.BV+1)}, s40, {v(V_L16)}")
    A1, A2 = 32, 96
    SRD_H3 = SRD_K
    A.e(f"s_mul_i32 s41, {s(S_HEAD)}, {4*56*1024}")
    srd(A, SRD_H3, S_WS, 4 * 56 * 1024, off=WS_H3, offreg=41)
    steps = [dict(id=('o', j), acc=A1, wsrd=SRD_W, wbase=62, woff=32*1024*j, bsrd=SRD_X, bv=[EF.BV]*4, boff=1024*j, bms=131072) for j in range(32)]
    steps += [dict(id=('h', j), acc=A2, wsrd=SRD_A3, wbase=63, woff=32*1024*j, bsrd=SRD_H3, bv=[EF.BV+1]*4, boff=1024*j, bms=56*1024) for j in range(14)]
    DEPTH = 7
    for j in range(DEPTH): ea_dmaW(A, vm, EF, steps[j], j)
    stamp(A, 'fW_issued')
    poll_check(A, vm, 28, 29, "fo")
    stamp(A, 'fo_ok')
    for j in range(DEPTH): ea_loadB(A, vm, EF, steps[j], j)
    stamp(A, 'fB_issued')
    A.e(f"v_mov_b32 v27, {hex(f2u(C_GELU2))}")
    for ms in range(2):
        b = 208
        for i in range(16): A.e(f"v_accvgpr_read_b32 {v(b+i)}, {a(96 + 16*ms + i)}")
        sm, sq, mb, rs = 200, 201, 202, 203
        A.e(f"v_add_f32 {v(sm)}, {v(b)}, {v(b+2)}"); A.e(f"v_add_f32 {v(sq)}, {v(b+1)}, {v(b+3)}")
        for q in range(2, 8):
            A.e(f"v_add_f32 {v(sm)}, {v(sm)}, {v(b+2*q)}"); A.e(f"v_add_f32 {v(sq)}, {v(sq)}, {v(b+2*q+1)}")
        A.e(f"v_mul_f32 {v(sm)}, 0x3b000000, {v(sm)}")
        A.e(f"v_mul_f32 {v(sq)}, 0x3b000000, {v(sq)}")
        A.e(f"v_fma_f32 {v(sq)}, -{v(sm)}, {v(sm)}, {v(sq)}")
        A.e(f"v_max_f32 {v(sq)}, 0, {v(sq)}")
        round_bf16(A, mb, sm)
        round_bf16(A, sq, sq)
        A.e(f"v_add_f32 {v(sq)}, 0x3727c5ac, {v(sq)}")
        round_bf16(A, sq, sq)
        A.e(f"v_sqrt_f32 {v(sq)}, {v(sq)}")
        round_bf16(A, sq, sq)
        A.e(f"v_rcp_f32 {v(rs)}, {v(sq)}")
        for half in range(2):
            Rr = [ACC + 32*ms + 16*half + i for i in range(16)]
            Tt = [208 + i for i in range(16)]
            for i in range(16): A.e(f"v_accvgpr_read_b32 {v(Tt[i])}, {a(CSR + 16*half + i)}")
            for i in range(16): A.e(f"v_fma_f32 {v(Rr[i])}, -{v(mb)}, {v(Tt[i])}, {v(Rr[i])}")
            for i in range(16): A.e(f"v_mul_f32 {v(Rr[i])}, {v(rs)}, {v(Rr[i])}")
            round_pairs(A, Rr, Tt)
            gelu_inplace(A, Rr, Tt, 27)
            P = 184 + 8 * half
            for i in range(8): A.e(f"v_cvt_pk_bf16_f32 {v(P+i)}, {v(Rr[2*i])}, {v(Rr[2*i+1])}")
            for u in range(2):
                A.e(f"s_lshl_b32 s40, {s(S_CB)}, 12")
                A.e(f"s_add_u32 s40, s40, {ms*56*1024 + (2*half + u)*1024}")
                A.e(f"buffer_store_dwordx4 {v(P + 4*u, 4)}, {v(L16)}, {s(SRD_O,4)}, s40 offen{SC()}"); vm.issue('sth3')
    stamp(A, 'g3_done')
    load_ptr(A, 64, "x"); load_ptr(A, 66, "out")
    for i in range(128): A.e(f"v_mov_b32 {v(A1+i)}, 0")
    def hook_f3():
        stamp(A, 'f_j8')
        vm.wait('sth3')
        A.e("s_barrier")
        A.e(f"s_lshl_b32 s40, {s(S_RB)}, 4"); A.e(f"s_add_u32 s40, s40, {s(S_CB)}")
        publish(A, F3, 40, "f3")
    def hook_p3():
        A.e(f"s_lshr_b32 s40, {s(S_HEAD)}, 1"); A.e("s_lshl_b32 s40, s40, 4")
        poll_issue(A, vm, F3, 40, 14, 22, 23, "f3")
    def hook_c3():
        poll_check(A, vm, 22, 23, "f3")
    ea_compute(A, vm, EF, steps, DEPTH, hooks={8: hook_f3, 18: hook_p3, 25: hook_c3})
    stamp(A, 'f_mm')
    A.e("s_waitcnt lgkmcnt(0)")
    A.e(f"s_lshl_b32 s41, {s(S_HEAD)}, 16")
    srd(A, SRD_A1, S_WS, 65536, off=WS_X1, offreg=41)
    srd(A, SRD_A2, 64, 2 * MB)
    srd(A, SRD_O, 66, 2 * MB)
    A.e(f"s_lshl_b32 s40, {s(S_WAVE)}, 14"); A.e(f"s_lshl_b32 s41, {s(S_QB)}, 11"); A.e("s_add_u32 s40, s40, s41")
    A.e("s_add_u32 s41, s40, 1024")
    A.e(f"buffer_load_dwordx4 {a(0,4)}, {v(V_L16)}, {s(SRD_A1,4)}, s40 offen{SC()}")
    A.e(f"buffer_load_dwordx4 {a(4,4)}, {v(V_L16)}, {s(SRD_A1,4)}, s41 offen{SC()}")
    A.e(f"s_lshl_b32 s40, {s(S_HEAD)}, 6"); A.e(f"s_lshl_b32 s41, {s(S_WAVE)}, 4"); A.e("s_add_u32 s40, s40, s41")
    A.e(f"v_add_u32 v14, s40, {v(V_I)}")
    A.e("v_lshlrev_b32 v14, 10, v14")
    A.e(f"v_lshl_add_u32 v14, {v(V_G)}, 3, v14")
    A.e(f"s_lshl_b32 s41, {s(S_QB)}, 7")
    A.e("v_add_u32 v14, s41, v14")
    for nt in range(4):
        A.e(f"buffer_load_dwordx2 {a(8 + 2*nt, 2)}, v14, {s(SRD_A2,4)}, 0 offen offset:{32*nt}")
    A.e(f"s_lshl_b32 s61, {s(S_WAVE)}, 14")
    ea_reduce(A, [A1, A2], 61, [16384*w for w in range(4)], 65536)
    stamp(A, 'f_red')
    Sr = [A1 + i for i in range(16)]; Hr = [A2 + i for i in range(16)]
    Tt = [A1 + 16 + i for i in range(16)]; U = [A2 + 16 + i for i in range(16)]
    round_pairs(A, Sr, Tt)
    round_pairs(A, Hr, Tt)
    A.e("s_waitcnt vmcnt(0)")
    for i in range(8): A.e(f"v_accvgpr_read_b32 {v(A1+32+i)}, {a(i)}")
    unpack8(A, Tt[0], A1 + 32, 8)
    for i in range(16): A.e(f"v_add_f32 {v(Hr[i])}, {v(Hr[i])}, {v(Tt[i])}")
    round_pairs(A, Hr, Tt)
    A.e(f"s_mov_b32 {s(S_T)}, {hex(f2u(-1.4426950408889634))}")
    for i in range(16): A.e(f"v_mul_f32 {v(Tt[i])}, {s(S_T)}, {v(Hr[i])}")
    for i in range(16): A.e(f"v_exp_f32 {v(Tt[i])}, {v(Tt[i])}")
    for i in range(16): A.e(f"v_add_f32 {v(Tt[i])}, 1.0, {v(Tt[i])}")
    for i in range(16): A.e(f"v_rcp_f32 {v(Tt[i])}, {v(Tt[i])}")
    for i in range(16): A.e(f"v_mul_f32 {v(Hr[i])}, {v(Hr[i])}, {v(Tt[i])}")
    round_pairs(A, Hr, Tt)
    for i in range(16): A.e(f"v_mul_f32 {v(Sr[i])}, {v(Sr[i])}, {v(Hr[i])}")
    round_pairs(A, Sr, Tt)
    for i in range(8): A.e(f"v_accvgpr_read_b32 {v(A1+32+i)}, {a(8+i)}")
    unpack8(A, Tt[0], A1 + 32, 8)
    for i in range(16): A.e(f"v_add_f32 {v(Sr[i])}, {v(Sr[i])}, {v(Tt[i])}")
    for i in range(8): A.e(f"v_cvt_pk_bf16_f32 {v(U[i])}, {v(Sr[2*i])}, {v(Sr[2*i+1])}")
    for nt in range(4):
        A.e(f"buffer_store_dwordx2 {v(U[2*nt], 2)}, v14, {s(SRD_O,4)}, 0 offen offset:{32*nt}")
    stamp(A, 'end')

def dump(A, which):
    if not CFG["stamp"]: return
    A.e("s_memrealtime s[40:41]")
    A.e("s_waitcnt lgkmcnt(0)")
    A.e(f"s_cmp_lg_u32 {s(S_WAVE)}, 0"); A.e(f"s_cbranch_scc1 L_dump{which}")
    A.e(f"s_add_u32 s56, {s(S_WS)}, {hex(40*MB + which*32768)}"); A.e(f"s_addc_u32 s57, {s(S_WS+1)}, 0"); A.e("s_mov_b32 s58, 32768"); A.e("s_mov_b32 s59, 0x20000")
    for i in range(16):
        A.e(f"s_sub_u32 s41, {s(70+2*i)}, s70"); A.e(f"v_mov_b32 v{236+i}, s41")
    A.e("v_mov_b32 v252, s68"); A.e("v_mov_b32 v253, s40"); A.e("v_mov_b32 v254, 0"); A.e("v_mov_b32 v255, 0")
    A.e("s_lshl_b32 s41, s2, 7"); A.e("v_mov_b32 v235, s41")
    A.e("s_mov_b64 exec, 1")
    for q in range(5): A.e(f"buffer_store_dwordx4 v[{236+4*q}:{239+4*q}], v235, s[56:59], 0 offen offset:{16*q}")
    A.e("s_mov_b64 exec, -1")
    A.label(f"L_dump{which}")

def main(path, stamp_on=False):
    CFG["stamp"] = stamp_on
    A = Asm()
    vm, dmaKV = gen_fused(A)
    if stamp_on:
        A.e("s_waitcnt lgkmcnt(0)"); dump(A, 0)
    stamp_part()
    vm2 = gen_attention(A, vm, dmaKV)
    gen_tail(A, vm2)
    if stamp_on:
        A.e("s_waitcnt lgkmcnt(0)"); dump(A, 1)
    A.label(f"{NAME}_end")
    A.e("s_endpgm")
    gen_slow(A)
    lines, rep = hazard.process(A.lines, fix=True)
    out = [f"; @launch grid=(256,1,1) block=(256,1,1) lds=163840", '.amdgcn_target "amdgcn-amd-amdhsa--gfx950"'] + lines
    B = Asm(); kernel_desc(B, NAME, 512, 102, 256)
    out += B.lines
    open(path, "w").write("\n".join(out) + "\n")
    print("hazard fixes:", len(rep))
    if stamp_on:
        import json; json.dump(STN["names"], open(path + ".names", "w"))

if __name__ == "__main__":
    main(sys.argv[1], len(sys.argv) > 2)
```
